```python
import torch

def _softmax(x, axis=-1):
    return torch.softmax(x, dim=axis)
def _gelu(x):
    return torch.nn.functional.gelu(x, approximate="tanh")
def _silu(x):
    return torch.nn.functional.silu(x)
def _sigmoid(x):
    return torch.sigmoid(x)
def _layernorm(x, axis=-1, eps=1e-5):
    m = x.mean(dim=axis, keepdim=True)
    v = x.var(dim=axis, keepdim=True, unbiased=False)
    return (x - m) / torch.sqrt(v + eps)
def _scatter_add(tgt, idx, src, axis=0):
    return tgt.clone().index_add_(axis, idx, src)
def _segment_sum(src, seg, n):
    out = torch.zeros((n,) + src.shape[1:], dtype=src.dtype)
    return out.index_add_(0, seg, src)
def _pad(x, pw):
    flat = tuple(v for pair in reversed(pw) for v in pair)
    return torch.nn.functional.pad(x, flat)

kernel_name = 'interleave_layers__mha_block__glu_gated_reglu__prompt'

def setup_inputs():

    _w = (lambda a: (lambda t: t.to(torch.bfloat16) if t.is_floating_point() else t)(torch.as_tensor(a)))
    def _A_setup():
        B, S, D, H = 1, 2048, 640, 32
        return {
            "x": _w((lambda *s: torch.randn(*s, dtype=torch.bfloat16) * 0.05)(B, S, D)),
            "wqkv": _w((lambda *s: torch.randn(*s, dtype=torch.bfloat16) * 0.05)(D, 3 * D)),
            "wo": _w((lambda *s: torch.randn(*s, dtype=torch.bfloat16) * 0.05)(D, D)),
        }
    _A_in = _A_setup()

    def _B_setup():
        B, S, D, F = 1, 2048, 640, 1728
        return {
            "x": _w((lambda *s: torch.randn(*s, dtype=torch.bfloat16) * 0.05)(B, S, D)),
            "W_gate": _w((lambda *s: torch.randn(*s, dtype=torch.bfloat16) * 0.8)(D, F) * (2.0 / D) ** 0.5),
            "W_up": _w((lambda *s: torch.randn(*s, dtype=torch.bfloat16) * 0.8)(D, F) * (2.0 / D) ** 0.5),
            "W_down": _w((lambda *s: torch.randn(*s, dtype=torch.bfloat16) * 0.8)(F, D) * (1.0 / F) ** 0.5),
        }
    _B_in = _B_setup()

    return {
        "A_x": _A_in["x"],
        "A_wqkv": _A_in["wqkv"],
        "A_wo": _A_in["wo"],
        "B_x": _B_in["x"],
        "B_W_gate": _B_in["W_gate"],
        "B_W_up": _B_in["W_up"],
        "B_W_down": _B_in["W_down"],
    }

def reference(A_x, A_wqkv, A_wo, B_x, B_W_gate, B_W_up, B_W_down):
    def _A_ref(x, wqkv, wo):
        B, S, D = x.shape
        H = 32
        Dh = D // H
        qkv = (lambda x, *d: x.permute(*d))((x @ wqkv).reshape(B, S, 3, H, Dh), 2, 0, 3, 1, 4)
        q, k, v = qkv[0], qkv[1], qkv[2]
        scores = torch.einsum("bhqd,bhkd->bhqk", q, k) * (Dh ** -0.5)
        p = _softmax(scores, axis=-1)
        o = torch.einsum("bhqk,bhkd->bhqd", p, v)
        return (lambda x, *d: x.permute(*d))(o, 0, 2, 1, 3).reshape(B, S, D) @ wo

    def _B_ref(x, W_gate, W_up, W_down):
        gate = torch.einsum("bsd,df->bsf", x, W_gate)
        up = torch.einsum("bsd,df->bsf", x, W_up)
        gate = gate * (lambda x, dt: x.to(dt))(gate > 0, gate.dtype)
        h = gate * up
        return torch.einsum("bsf,fd->bsd", h, W_down)

    x = A_x
    x = x + _A_ref(_layernorm(x, axis=-1), A_wqkv, A_wo)
    x = x + _B_ref(_layernorm(x, axis=-1), B_W_gate, B_W_up, B_W_down)
    x = x + _A_ref(_layernorm(x, axis=-1), A_wqkv, A_wo)
    x = x + _B_ref(_layernorm(x, axis=-1), B_W_gate, B_W_up, B_W_down)
    return x
```

```python
class K:
    def __init__(self, name, grid, block, lds, nvgpr, nagpr=0, nsgpr=96):
        self.name = name; self.grid = grid; self.block = block; self.lds = lds
        self.nvgpr = nvgpr; self.nagpr = nagpr; self.nsgpr = nsgpr
        self.lines = []
        self.nlab = 0
    def __call__(self, s, *more):
        for t in (s,) + more:
            for ln in t.split("\n"):
                ln = ln.strip()
                if not ln: continue
                if ln.endswith(":") : self.lines.append(ln)
                else: self.lines.append("    " + ln)
    def label(self, base):
        self.nlab += 1
        return f"L_{self.name}_{base}_{self.nlab}"
    def text(self):
        acc = (self.nvgpr + 3) // 4 * 4
        nfv = acc + self.nagpr if self.nagpr else self.nvgpr
        return f""".text
.globl {self.name}
.p2align 8
.type {self.name},@function
{self.name}:
""" + "\n".join(self.lines) + f"""
.section .rodata,"a"
.p2align 6
.amdhsa_kernel {self.name}
  .amdhsa_next_free_vgpr {nfv}
  .amdhsa_next_free_sgpr {self.nsgpr}
  .amdhsa_accum_offset {acc}
  .amdhsa_group_segment_fixed_size 0
  .amdhsa_kernarg_size 80
  .amdhsa_user_sgpr_count 2
  .amdhsa_user_sgpr_kernarg_segment_ptr 1
  .amdhsa_system_sgpr_workgroup_id_x 1
  .amdhsa_float_denorm_mode_32 3
.end_amdhsa_kernel
"""
    def launch_line(self):
        return f"; @launch kernel={self.name} grid=({self.grid},1,1) block=({self.block},1,1) lds={self.lds}"

def vr(a, n): return f"v[{a}:{a+n-1}]" if n > 1 else f"v{a}"
def ar(a, n): return f"a[{a}:{a+n-1}]" if n > 1 else f"a{a}"
def sr(a, n): return f"s[{a}:{a+n-1}]" if n > 1 else f"s{a}"

XF    = 0x0000000
QW    = 0x0280000
KV    = 0x0500000
OF    = 0x0A00000
HF    = 0x0C80000
WQKVF = 0x1340000
WGUF  = 0x1598000
WOF   = 0x19F8000
WDF   = 0x1AC0000
CSQKV = 0x1CDC000
CSGU  = 0x1CDE000
WS_USED = 0x1D00000
```

```python
from fw import *
from k_prep import ws_srd
from k_qkv import f2u

SA, SB, OA, OB, PA, PB = 8, 24, 40, 56, 72, 80
QA1, QA2, QB1, QB2 = 88, 92, 94, 98
K1 = [100, 106]; K2 = [104, 110]; VV = [112, 120]
MASKV = 0x000FFFFF

def qk(k, S, kb, Q1, Q2, part):
    if part == 0: k(f"v_mfma_f32_32x32x16_bf16 {vr(S,16)}, {vr(K1[kb],4)}, {vr(Q1,4)}, 0")
    else: k(f"v_mfma_f32_32x32x8_bf16 {vr(S,16)}, {vr(K2[kb],2)}, {vr(Q2,2)}, {vr(S,16)}")
def pv(k, O, vb, P, i):
    k(f"v_mfma_f32_32x32x16_bf16 {vr(O,16)}, {vr(VV[vb]+4*i,4)}, {vr(P+4*i,4)}, {vr(O,16)}")

def softmax_ops(S, P):
    ops = []
    e = lambda i: f"v_exp_f32 v{S+i}, v{S+i}"
    c = lambda i: f"v_cvt_pk_bf16_f32 v{P+i}, v{S+2*i}, v{S+2*i+1}"
    ops += [e(0), e(1), e(2), e(3), c(0)]
    for i in range(2, 8):
        ops += [e(2*i), e(2*i+1), c(i-1)]
    ops += [c(7)]
    return ops

def rowmax(k, S, t0, t1):
    k(f"v_max3_f32 v{t0}, v{S}, v{S+1}, v{S+2}")
    for i in range(3, 15, 2): k(f"v_max3_f32 v{t0}, v{t0}, v{S+i}, v{S+i+1}")
    k(f"v_max_f32 v{t0}, v{t0}, v{S+15}")

def crossmax_split(k, t0, t1, t2, Q2):
    k(f"v_mov_b32 v{t1}, v{t0}", "s_nop 1", f"v_permlane32_swap_b32 v{t1}, v{t0}", "s_nop 1", f"v_max_f32 v{t0}, v{t0}, v{t1}")
    k(f"v_sub_f32 v{t0}, 0, v{t0}")
    k(f"v_and_b32 v{t1}, 0xffff0000, v{t0}", f"v_sub_f32 v{t0}, v{t0}, v{t1}", f"v_and_b32 v{t2}, 0xffff0000, v{t0}", f"v_sub_f32 v{t0}, v{t0}, v{t2}")
    k(f"v_lshrrev_b32 v{t1}, 16, v{t1}")
    k("s_mov_b64 exec, s[30:31]")
    k(f"v_or_b32 v{Q2}, v{t1}, v{t2}", f"v_lshrrev_b32 v{Q2+1}, 16, v{t0}")
    k("s_mov_b64 exec, -1")

def gen_attn(bar2=((1, 0),)):
    k = K("attn_kernel", 256, 1024, 163840, nvgpr=128)
    Lend = k.label("end")
    k("s_cmp_ge_u32 s2, 256", f"s_cbranch_scc1 {Lend}")
    k("s_load_dwordx2 s[48:49], s[0:1], 72")
    k("v_lshrrev_b32 v2, 6, v0", "v_and_b32 v1, 63, v0", "v_lshlrev_b32 v3, 4, v1", "v_readfirstlane_b32 s22, v2")
    k("v_and_b32 v4, 31, v1", "v_lshrrev_b32 v5, 5, v1")
    k("s_and_b32 s12, s2, 7", "s_lshr_b32 s13, s2, 3", "s_lshl_b32 s12, s12, 2", "s_lshr_b32 s14, s13, 3", "s_add_u32 s12, s12, s14", "s_and_b32 s13, s13, 7")
    k("s_lshr_b32 s14, s22, 2", "s_and_b32 s15, s22, 3")
    k("s_lshl_b32 s16, s13, 3", "s_lshl_b32 s17, s15, 1", "s_add_u32 s16, s16, s17")
    k("s_lshl_b32 s17, s12, 6", "s_add_u32 s17, s17, s16", "s_mul_i32 s17, s17, 1280", f"s_add_u32 s17, s17, {QW}")
    k("s_mul_i32 s18, s12, 163840", f"s_add_u32 s18, s18, {KV}")
    k("s_mul_i32 s19, s14, 40960")
    k("s_lshl_b32 s20, s15, 10", "s_add_u32 s20, s20, s19")
    k("s_add_u32 s21, s18, s20")
    k("s_mov_b32 s24, -1", "s_mov_b32 s25, 0")
    k(f"s_mov_b32 s26, {hex(MASKV)}", f"s_mov_b32 s27, {hex(MASKV)}")
    k("s_mov_b32 s30, 0", "s_mov_b32 s31, -1")
    k("v_lshlrev_b32 v6, 3, v4")
    for r in (QA2, QA2+1, QB2, QB2+1): k(f"v_mov_b32 v{r}, 0")
    for b in range(2): k(f"v_mov_b32 v{K2[b]}, 0x3f803f80", f"v_mov_b32 v{K2[b]+1}, 0x3f80")
    k("s_waitcnt lgkmcnt(0)")
    ws_srd(k)
    k(f"buffer_load_dwordx4 {vr(QA1,4)}, v3, s[4:7], s17 offen", f"buffer_load_dwordx4 {vr(QB1,4)}, v3, s[4:7], s17 offen offset:1280",
      f"buffer_load_dwordx4 {vr(K1[0],4)}, v3, s[4:7], s18 offen")
    k("s_mov_b64 exec, s[24:25]")
    k(f"buffer_load_dwordx2 {vr(QA2,2)}, v6, s[4:7], s17 offen offset:1024", f"buffer_load_dwordx2 {vr(QB2,2)}, v6, s[4:7], s17 offen offset:2304",
      f"buffer_load_dwordx2 {vr(K2[0],2)}, v6, s[4:7], s18 offen offset:1024")
    k("s_mov_b64 exec, -1")
    for i in range(10):
        k(f"s_add_u32 m0, s20, {i*4096}", "s_nop 0", "buffer_load_dwordx4 v3, s[4:7], s21 offen lds", "s_add_u32 s21, s21, 4096")
    for i in range(16): k(f"v_mov_b32 v{VV[0]+i}, 0x3f803f80")
    for i in range(32): k(f"v_mov_b32 v{OA+i}, 0")
    k("v_add_u32 v2, s19, v3", "v_mul_u32_u24 v7, 320, v5", "v_lshl_add_u32 v7, v4, 4, v7", "v_add_u32 v7, s19, v7")
    k("s_waitcnt vmcnt(10)")
    k("v_add_u32 v6, s19, v6")
    qk(k, SA, 0, QA1, QA2, 0); qk(k, SA, 0, QA1, QA2, 1); qk(k, SB, 0, QB1, QB2, 0); qk(k, SB, 0, QB1, QB2, 1)
    k("s_nop 9")
    rowmax(k, SA, PA, PA+1); crossmax_split(k, PA, PA+1, PA+2, QA2)
    rowmax(k, SB, PA, PA+1); crossmax_split(k, PA, PA+1, PA+2, QB2)
    def ldK(t):
        k("s_mov_b64 exec, s[24:25]", f"ds_read_b64 {vr(K2[t&1],2)}, v6 offset:{t*2560+1024}", "s_mov_b64 exec, -1",
          f"ds_read_b128 {vr(K1[t&1],4)}, v2 offset:{t*2560}")
    def ldV(t, restore):
        k("s_mov_b64 exec, s[26:27]", f"ds_read_b128 {vr(VV[t&1],4)}, v7 offset:{t*2560+1280}", f"ds_read_b128 {vr(VV[t&1]+4,4)}, v7 offset:{t*2560+1920}")
        if restore: k("s_mov_b64 exec, -1")
    k("s_waitcnt vmcnt(8)", "s_barrier")
    ldK(0); ldV(0, False); ldK(1)
    k("s_waitcnt lgkmcnt(4)")
    qk(k, SA, 0, QA1, QA2, 0); qk(k, SA, 0, QA1, QA2, 1)
    k("s_nop 11")
    NT = 16
    def phase(ops, mf):
        pos = {0: 0, 5: 1, 11: 2, 17: 3}
        for i, o in enumerate(ops):
            if i in pos and pos[i] < len(mf): mf[pos[i]]()
            k(o)
    bar2 = dict(bar2)
    for t in range(NT):
        mf = [lambda: qk(k, SB, t&1, QB1, QB2, 0), lambda: qk(k, SB, t&1, QB1, QB2, 1)]
        if t > 0: mf += [lambda: pv(k, OB, (t-1)&1, PB, 0), lambda: pv(k, OB, (t-1)&1, PB, 1)]
        phase(softmax_ops(SA, PA), mf)
        if t in bar2: k(f"s_waitcnt vmcnt({bar2[t]})", "s_barrier")
        k("s_waitcnt lgkmcnt(0)")
        if t + 1 < NT: ldV(t + 1, not (t + 2 < NT))
        if t + 2 < NT: ldK(t + 2)
        mf = []
        if t + 1 < NT: mf += [lambda: qk(k, SA, (t+1)&1, QA1, QA2, 0), lambda: qk(k, SA, (t+1)&1, QA1, QA2, 1)]
        else: mf += [lambda: None]
        mf += [lambda: pv(k, OA, t&1, PA, 0), lambda: pv(k, OA, t&1, PA, 1)]
        phase(softmax_ops(SB, PB), mf)
    k("s_nop 1")
    pv(k, OB, (NT-1)&1, PB, 0); pv(k, OB, (NT-1)&1, PB, 1)
    k("s_mul_i32 s23, s15, 24576", "s_mul_i32 s28, s14, 3072", "s_add_u32 s28, s28, s23", "v_add_u32 v2, s28, v3")
    k("s_barrier")
    k("s_nop 7")
    for gi in range(3): k(f"ds_write_b128 v2, {vr(OA+4*gi,4)} offset:{gi*1024}")
    for gi in range(3): k(f"ds_write_b128 v2, {vr(OB+4*gi,4)} offset:{12288+gi*1024}")
    k("s_mul_i32 s28, s14, 12288", "s_add_u32 s28, s28, s23", "v_add_u32 v2, s28, v3")
    k("s_waitcnt lgkmcnt(0)", "s_barrier")
    k("s_cmp_ge_u32 s14, 2", f"s_cbranch_scc1 {Lend}")
    for j in range(4):
        for gi in range(3):
            d = (OA if j == 0 else SA + 12*(j-1)) + 4*gi if j < 3 else OB + 4*gi
            k(f"ds_read_b128 {vr(d,4)}, v2 offset:{j*3072+gi*1024}")
    k("s_add_u32 s16, s16, s14", "s_mul_i32 s20, s16, 40960", f"s_add_u32 s20, s20, {OF}")
    k("s_mul_i32 s28, s12, 5", "v_add_u32 v6, s28, v5", "v_and_b32 v7, 1, v6", "v_lshrrev_b32 v6, 1, v6", "v_lshlrev_b32 v6, 9, v6",
      "v_lshl_add_u32 v6, v7, 3, v6", "v_lshl_add_u32 v6, v4, 4, v6")
    k("s_mov_b32 s29, 0")
    k("s_waitcnt lgkmcnt(0)")
    for i in range(12): k(f"v_add_f32 v{OA+i}, v{OA+i}, v{SA+i}", f"v_add_f32 v{OB+i}, v{OB+i}, v{SA+12+i}")
    for i in range(12): k(f"v_add_f32 v{OA+i}, v{OA+i}, v{OB+i}")
    Lfin = k.label("fin"); Lslow = k.label("slow"); Lst = k.label("st")
    k(f"{Lfin}:")
    k(f"v_mov_b32 v{PA}, v{OA+8}", f"v_mov_b32 v{PA+1}, v{OA+8}", "s_nop 1", f"v_permlane32_swap_b32 v{PA}, v{PA+1}", "s_nop 1")
    k(f"v_rcp_f32 v{PA+2}, v{PA+1}", f"v_mov_b32 v{PA+3}, 0")
    for i in range(12): k(f"v_mul_f32 v{OA+i}, v{OA+i}, v{PA+2}")
    k("s_cmp_lg_u32 s29, 0", f"s_cbranch_scc1 {Lst}")
    for i in range(12): k(f"v_fma_f32 v{PA+3}, v{OA+i}, 0, v{PA+3}")
    k(f"v_cmp_u_f32 vcc, v{PA+3}, v{PA+3}", f"v_cmp_nge_f32 s[32:33], v{PA+1}, 0.5", "s_or_b64 vcc, vcc, s[32:33]")
    k(f"v_mov_b32 v{PA+4}, {hex(f2u(2.0**100))}", f"v_cmp_nge_f32 s[32:33], v{PA+4}, v{PA+1}", "s_or_b64 vcc, vcc, s[32:33]")
    k(f"s_cbranch_vccnz {Lslow}")
    k(f"{Lst}:")
    for i in range(6): k(f"v_cvt_pk_bf16_f32 v{OA+i}, v{OA+2*i}, v{OA+2*i+1}")
    k(f"buffer_store_dwordx2 {vr(OA,2)}, v6, s[4:7], s20 offen", f"buffer_store_dwordx2 {vr(OA+2,2)}, v6, s[4:7], s20 offen offset:512")
    k("s_mov_b64 exec, s[24:25]", f"buffer_store_dwordx2 {vr(OA+4,2)}, v6, s[4:7], s20 offen offset:1024")
    k(f"{Lend}:")
    k("s_endpgm")
    k(f"{Lslow}:")
    Lm = k.label("mv"); L1 = k.label("p1"); L2 = k.label("p2")
    k("s_mov_b32 s29, 1")
    k("s_cmp_eq_u32 s14, 0", f"s_cbranch_scc1 {Lm}")
    for i in range(6): k(f"v_mov_b32 v{QA1+i}, v{QB1+i}")
    k(f"{Lm}:")
    k("s_mov_b64 exec, s[30:31]", f"v_mov_b32 v{QA2}, 0", f"v_mov_b32 v{QA2+1}, 0", "s_mov_b64 exec, -1")
    k("v_lshlrev_b32 v2, 3, v4", "v_mul_u32_u24 v7, 320, v5", "v_lshl_add_u32 v7, v4, 4, v7")
    k(f"v_mov_b32 v{PB}, 0xff800000")
    k("s_mov_b32 s21, s18", "s_mov_b32 s23, 64")
    def gldK():
        k(f"buffer_load_dwordx4 {vr(K1[0],4)}, v3, s[4:7], s21 offen", "s_mov_b64 exec, s[24:25]",
          f"buffer_load_dwordx2 {vr(K2[0],2)}, v2, s[4:7], s21 offen offset:1024", "s_mov_b64 exec, -1")
    k(f"{L1}:")
    gldK()
    k("s_waitcnt vmcnt(0)")
    qk(k, SA, 0, QA1, QA2, 0); qk(k, SA, 0, QA1, QA2, 1)
    k("s_nop 15")
    rowmax(k, SA, PA, PA+1)
    k(f"v_max_f32 v{PB}, v{PB}, v{PA}")
    k("s_add_u32 s21, s21, 2560", "s_sub_u32 s23, s23, 1", "s_cmp_lg_u32 s23, 0", f"s_cbranch_scc1 {L1}")
    crossmax_split(k, PB, PA+1, PA+2, QA2)
    for i in range(16): k(f"v_mov_b32 v{OA+i}, 0")
    k("s_mov_b32 s21, s18", "s_mov_b32 s23, 64")
    k(f"{L2}:")
    gldK()
    k("s_mov_b64 exec, s[26:27]", f"buffer_load_dwordx4 {vr(VV[0],4)}, v7, s[4:7], s21 offen offset:1280",
      f"buffer_load_dwordx4 {vr(VV[0]+4,4)}, v7, s[4:7], s21 offen offset:1920", "s_mov_b64 exec, -1")
    k("s_waitcnt vmcnt(0)")
    qk(k, SA, 0, QA1, QA2, 0); qk(k, SA, 0, QA1, QA2, 1)
    k("s_nop 15")
    for o in softmax_ops(SA, PA): k(o)
    k("s_nop 1")
    pv(k, OA, 0, PA, 0); pv(k, OA, 0, PA, 1)
    k("s_add_u32 s21, s21, 2560", "s_sub_u32 s23, s23, 1", "s_cmp_lg_u32 s23, 0", f"s_cbranch_scc1 {L2}")
    k("s_nop 15")
    k(f"s_branch {Lfin}")
    return k
```

```python
from fw import *
from k_prep import ws_srd
from k_qkv import f2u, stats_math

RING = 160

def gemm16_main(k, MB, NB, NK, RA, A0, ACC, G, D, stats, n_pre_ops, late_ops=None, late_step=None, MAXOUT=60):
    ops = []
    need = [0] * (NK + 1)
    r = 0
    for s in range(NK):
        for mb in range(MB): ops.append(("A", s, mb))
        while 4 * r < NB * (s + 1):
            ops.append(("W", r)); r += 1
        need[s + 1] = len(ops)
    st = dict(issued=0, retired=-n_pre_ops, freep=0, done_steps=0, late=0)
    def areg(s, mb): return A0 + ((s % RA) * MB + mb) * 4
    def can_issue():
        if st["issued"] >= len(ops): return False
        if st["issued"] - st["retired"] >= MAXOUT: return False
        o = ops[st["issued"]]
        if o[0] == "W": return 4 * o[1] + 3 - RING < st["freep"]
        return o[1] - RA < st["done_steps"]
    def issue():
        o = ops[st["issued"]]
        if o[0] == "A":
            _, s, mb = o
            k(f"buffer_load_dwordx4 {vr(areg(s,mb),4)}, v8, s[4:7], s16 offen offset:{(s&1)*2048+mb*256}")
            if (s & 1) == 1 and mb == MB - 1: k("s_add_u32 s16, s16, 4096")
        else:
            k(f"s_add_u32 m0, s18, {(4*o[1] % RING)*1024}", "s_nop 0", "buffer_load_dwordx4 v3, s[4:7], s17 offen lds", "s_add_u32 s17, s17, 4096")
        st["issued"] += 1
    while can_issue(): issue()
    yield "pre"
    NF = NK * NB
    bounds = list(range(G, NK, G)) + [NK] if isinstance(G, int) else G
    cov = [0]
    def rd(f):
        s = f // NB
        if s >= cov[0]:
            e = next(b for b in bounds if b > s)
            assert st["issued"] >= need[e], (f, st, need[e])
            n = st["issued"] + st["late"] - need[e]
            assert n <= 63
            k(f"s_waitcnt vmcnt({n})", "s_barrier")
            st["retired"] = need[e]; st["freep"] = max(0, f - D + 1); cov[0] = e
        p = f % RING
        base = ("v3", "v14", "v15")[p // 64]
        k(f"ds_read_b128 {ar((f % D)*4,4)}, {base} offset:{(p % 64)*1024}")
    for f in range(D): rd(f)
    for f in range(NF):
        s, b = divmod(f, NB)
        k(f"s_waitcnt lgkmcnt({min(D - 1, NF - 1 - f)})")
        for mb in range(MB):
            d = vr(ACC + (mb * NB + b) * 4, 4)
            k(f"v_mfma_f32_16x16x32_bf16 {d}, {ar((f % D)*4,4)}, {vr(areg(s,mb),4)}, {d}")
        if stats and b < 4 * MB:
            mb, rr = divmod(b, 4)
            k(f"v_dot2c_f32_bf16 v{4+mb}, s27, v{areg(s,mb)+rr}", f"v_dot2c_f32_bf16 v{6+mb}, v{areg(s,mb)+rr}, v{areg(s,mb)+rr}")
        if f + D < NF: rd(f + D)
        if b == NB - 1: st["done_steps"] = s + 1
        if can_issue(): issue()
        if late_ops and s == late_step and b == NB - 1:
            assert st["issued"] == len(ops)
            st["late"] = late_ops()
    yield "done"

def common_head(k, ngrid):
    Lend = k.label("end")
    k(f"s_cmp_ge_u32 s2, {ngrid}", f"s_cbranch_scc1 {Lend}")
    k("s_load_dwordx2 s[48:49], s[0:1], 72", "s_load_dwordx2 s[46:47], s[0:1], 56")
    k("v_lshrrev_b32 v2, 6, v0", "v_and_b32 v1, 63, v0", "v_lshlrev_b32 v3, 4, v1", "v_readfirstlane_b32 s22, v2")
    k("v_and_b32 v9, 15, v1", "v_lshrrev_b32 v10, 4, v1")
    k("v_lshlrev_b32 v8, 9, v10", "v_lshl_add_u32 v8, v9, 4, v8")
    k("v_add_u32 v14, 0x10000, v3", "v_add_u32 v15, 0x20000, v3")
    k("s_lshl_b32 s18, s22, 10")
    return Lend

def gen_gu(G=1, D=8):
    k = K("gu_kernel", 256, 256, 163840, nvgpr=240, nagpr=64)
    MB, NB, NK, RA = 2, 14, 20, 12
    A0 = 16; ACC = 112
    Lend = common_head(k, 256)
    k("s_and_b32 s12, s2, 7", "s_lshr_b32 s13, s2, 3", "s_lshl_b32 s12, s12, 1", "s_and_b32 s14, s13, 1", "s_add_u32 s12, s12, s14", "s_lshr_b32 s13, s13, 1")
    k("s_lshl_b32 s12, s12, 2", "s_add_u32 s12, s12, s22")
    k("s_mul_i32 s16, s12, 40960", f"s_add_u32 s16, s16, {XF}")
    k(f"s_mul_i32 s17, s13, {20*14*1024}", f"s_add_u32 s17, s17, {WGUF}", "s_add_u32 s17, s17, s18")
    k("s_mov_b32 s27, 0x3f803f80")
    k("s_waitcnt lgkmcnt(0)")
    ws_srd(k)
    CS = A0
    def late():
        k(f"s_mul_i32 s26, s13, {14*64}", f"s_add_u32 s26, s26, {CSGU}", "v_lshlrev_b32 v11, 4, v10")
        for b in range(14): k(f"buffer_load_dwordx4 {vr(csreg(b),4)}, v11, s[4:7], s26 offen offset:{b*64}")
        return 14
    def csreg(b):
        if b < 8: return A0 + 64 + 4 * b
        if b < 12: return 224 + 4 * (b - 8)
        return A0 + 4 * (b - 12)
    g = gemm16_main(k, MB, NB, NK, RA, A0, ACC, G, D, True, 0, late, 13)
    next(g)
    for i in range(112): k(f"v_mov_b32 v{ACC+i}, 0")
    for i in range(4, 8): k(f"v_mov_b32 v{i}, 0")
    k("v_lshrrev_b32 v13, 1, v10", "v_lshlrev_b32 v13, 9, v13", "v_and_b32 v12, 1, v10", "v_lshl_add_u32 v13, v12, 3, v13", "v_lshl_add_u32 v13, v9, 4, v13")
    k(f"s_mul_i32 s20, s12, {216*512}", f"s_mul_i32 s21, s13, {14*512}", "s_add_u32 s20, s20, s21", f"s_add_u32 s20, s20, {HF}", "s_add_u32 s21, s20, 4096")
    next(g)
    T = A0 + 16
    k("s_nop 2")
    for i in range(4): k(f"v_mov_b32 v{T+i}, v{4+i}")
    k("s_nop 1")
    for i in range(4): k(f"v_permlane32_swap_b32 v{T+i}, v{4+i}")
    k("s_nop 1")
    for i in range(4): k(f"v_add_f32 v{4+i}, v{4+i}, v{T+i}")
    for i in range(4): k(f"v_mov_b32 v{T+i}, v{4+i}")
    k("s_nop 1")
    for i in range(4): k(f"v_permlane16_swap_b32 v{T+i}, v{4+i}")
    k("s_nop 1")
    for i in range(4): k(f"v_add_f32 v{4+i}, v{4+i}, v{T+i}")
    for mb in range(2):
        s_, q_ = 4 + mb, 6 + mb
        k(f"v_mul_f32 v{s_}, {hex(f2u(1/640))}, v{s_}", f"v_mul_f32 v{q_}, {hex(f2u(1/640))}, v{q_}")
        k(f"v_fma_f32 v{q_}, -v{s_}, v{s_}, v{q_}", f"v_max_f32 v{q_}, 0, v{q_}", f"v_add_f32 v{q_}, {hex(f2u(1e-5))}, v{q_}")
        k(f"v_rcp_f32 v{T+2*mb+1}, v{q_}", f"v_sub_f32 v{T+2*mb}, 0, v{s_}")
    k("s_waitcnt vmcnt(0)")
    for bi in range(7):
        if bi == 3: k("s_cmp_eq_u32 s13, 15", f"s_cbranch_scc1 {Lend}")
        for mb in range(2):
            ga = ACC + (mb * NB + bi) * 4; ua = ACC + (mb * NB + 7 + bi) * 4; P = vr(T + 2 * mb, 2)
            for h in range(2):
                k(f"v_pk_fma_f32 {vr(ga+2*h,2)}, {vr(csreg(bi)+2*h,2)}, {P}, {vr(ga+2*h,2)} op_sel:[0,0,0] op_sel_hi:[1,0,1]")
                k(f"v_pk_fma_f32 {vr(ua+2*h,2)}, {vr(csreg(7+bi)+2*h,2)}, {P}, {vr(ua+2*h,2)} op_sel:[0,0,0] op_sel_hi:[1,0,1]")
            for i in range(4): k(f"v_max_f32 v{ga+i}, 0, v{ga+i}")
            for h in range(2): k(f"v_pk_mul_f32 {vr(ua+2*h,2)}, {vr(ua+2*h,2)}, {P} op_sel:[0,1] op_sel_hi:[1,1]")
            for h in range(2): k(f"v_pk_mul_f32 {vr(ga+2*h,2)}, {vr(ga+2*h,2)}, {vr(ua+2*h,2)}")
            k(f"v_cvt_pk_bf16_f32 v{ga}, v{ga}, v{ga+1}", f"v_cvt_pk_bf16_f32 v{ga+1}, v{ga+2}, v{ga+3}")
            k(f"buffer_store_dwordx2 {vr(ga,2)}, v13, s[4:7], s{20 if bi < 4 else 21} offen offset:{(bi%4)*1024+mb*256}")
    k(f"{Lend}:")
    k("s_endpgm")
    return k

def gen_proj(name, NK, ABASE, WBASE, final, G=2, D=8):
    MB, NB = 1, 5
    A0 = 48; ACC = 16; RES = 36
    RA = min(NK, 48)
    k = K(name, 256, 256, min(RING, NK * NB) * 1024 if NK * NB > RING else ((NK * NB + 3) // 4 * 4) * 1024, nvgpr=A0 + RA * 4, nagpr=4 * D)
    Lend = common_head(k, 256)
    k("s_and_b32 s12, s2, 7", "s_lshr_b32 s13, s2, 3", "s_lshl_b32 s12, s12, 2", "s_and_b32 s14, s13, 3", "s_add_u32 s12, s12, s14", "s_lshr_b32 s13, s13, 2")
    k("s_lshl_b32 s12, s12, 1", "s_lshr_b32 s14, s22, 1", "s_add_u32 s12, s12, s14", "s_and_b32 s14, s22, 1", "s_lshl_b32 s14, s14, 8")
    k(f"s_mul_i32 s16, s12, {NK*4*512}", f"s_add_u32 s16, s16, {ABASE}", "s_add_u32 s16, s16, s14")
    k(f"s_mul_i32 s17, s13, {NK*5*1024}", f"s_add_u32 s17, s17, {WBASE}", "s_add_u32 s17, s17, s18")
    k("v_lshrrev_b32 v13, 1, v10", "v_lshlrev_b32 v13, 9, v13", "v_and_b32 v12, 1, v10", "v_lshl_add_u32 v13, v12, 3, v13", "v_lshl_add_u32 v13, v9, 4, v13")
    k("s_mul_i32 s20, s12, 40960", f"s_mul_i32 s21, s13, {10*512}", "s_add_u32 s20, s20, s21", f"s_add_u32 s20, s20, {XF}", "s_add_u32 s20, s20, s14", "s_add_u32 s21, s20, 4096")
    k("s_waitcnt lgkmcnt(0)")
    ws_srd(k)
    def late():
        for b in range(5): k(f"buffer_load_dwordx2 {vr(RES+2*b,2)}, v13, s[4:7], s{20 if b < 4 else 21} offen offset:{(b%4)*1024}")
        return 5
    late_step = 0 if NK <= 20 else NK - 16
    g = gemm16_main(k, MB, NB, NK, RA, A0, ACC, G, D, False, 0, late, late_step, MAXOUT=56)
    next(g)
    for i in range(20): k(f"v_mov_b32 v{ACC+i}, 0")
    if final:
        k("s_mov_b32 s8, s46", "s_and_b32 s9, s47, 0xffff", f"s_mov_b32 s10, {2048*1280}", "s_mov_b32 s11, 0x00020000")
        k("v_mul_u32_u24 v12, 1280, v9", "v_lshl_add_u32 v12, v10, 3, v12")
        k("s_lshr_b32 s24, s14, 4", "s_lshl_b32 s23, s12, 5", "s_add_u32 s23, s23, s24", "s_mul_i32 s23, s23, 1280", "s_mul_i32 s24, s13, 160", "s_add_u32 s23, s23, s24")
    next(g)
    k("s_waitcnt vmcnt(0)", "s_nop 7")
    T = A0
    for b in range(5):
        a = ACC + 4 * b; r = RES + 2 * b
        k(f"v_lshlrev_b32 v{T}, 16, v{r}", f"v_and_b32 v{T+1}, 0xffff0000, v{r}", f"v_lshlrev_b32 v{T+2}, 16, v{r+1}", f"v_and_b32 v{T+3}, 0xffff0000, v{r+1}")
        k(f"v_pk_add_f32 {vr(a,2)}, {vr(a,2)}, {vr(T,2)}", f"v_pk_add_f32 {vr(a+2,2)}, {vr(a+2,2)}, {vr(T+2,2)}")
        k(f"v_cvt_pk_bf16_f32 v{a}, v{a}, v{a+1}", f"v_cvt_pk_bf16_f32 v{a+1}, v{a+2}, v{a+3}")
        if final: k(f"buffer_store_dwordx2 {vr(a,2)}, v12, s[8:11], s23 offen offset:{b*32}")
        else: k(f"buffer_store_dwordx2 {vr(a,2)}, v13, s[4:7], s{20 if b < 4 else 21} offen offset:{(b%4)*1024}")
    k(f"{Lend}:")
    k("s_endpgm")
    return k
```

```python
from fw import *

def prologue_ptrs(k):
    k("s_load_dwordx16 s[32:47], s[0:1], 0")
    k("s_load_dwordx2 s[48:49], s[0:1], 72")

def ws_srd(k, base=4):
    k(f"s_mov_b32 s{base}, s48", f"s_and_b32 s{base+1}, s49, 0xffff", f"s_mov_b32 s{base+2}, {WS_USED}", f"s_mov_b32 s{base+3}, 0x00020000")

def gen_prep():
    k = K("prep_kernel", 156, 640, 81920, nvgpr=64)
    Lend = k.label("end"); Lx = k.label("x"); Lload = k.label("load")
    k(f"s_cmp_ge_u32 s2, 156", f"s_cbranch_scc1 {Lend}")
    prologue_ptrs(k)
    k("v_lshrrev_b32 v2, 6, v0", "v_and_b32 v1, 63, v0", "s_nop 0", "v_readfirstlane_b32 s22, v2")
    k("s_waitcnt lgkmcnt(0)")
    ws_srd(k)
    k("s_mov_b32 s11, 0x00020000")
    k(f"s_cmp_ge_u32 s2, 124", f"s_cbranch_scc1 {Lx}")
    L1 = k.label("t1"); L2 = k.label("t2"); L3 = k.label("t3"); L4 = k.label("t4")
    k("s_mov_b32 s14, 0", "s_mov_b32 s21, 0")
    k(f"s_cmp_ge_u32 s2, 30", f"s_cbranch_scc1 {L1}")
    k("s_mov_b32 s8, s34", "s_and_b32 s9, s35, 0xffff", f"s_mov_b32 s10, {640*3840}", "s_mov_b32 s12, 3840", "s_mov_b32 s13, s2", "s_mov_b32 s15, 0",
      "s_mov_b32 s16, 0", "s_mov_b32 s17, 0", "s_mov_b32 s18, 0", "s_mov_b32 s19, 0", "s_mov_b32 s20, 0", f"s_branch {Lload}")
    k(f"{L1}:")
    k(f"s_cmp_ge_u32 s2, 84", f"s_cbranch_scc1 {L3}")
    k(f"s_mov_b32 s10, {640*3456}", "s_mov_b32 s12, 3456", "s_mov_b32 s15, 1", "s_mov_b32 s16, 9363", "s_mov_b32 s17, 7",
      f"s_mov_b32 s18, {20*14*1024}", f"s_mov_b32 s19, {14*1024}", f"s_mov_b32 s20, {WGUF}")
    k(f"s_cmp_ge_u32 s2, 57", f"s_cbranch_scc1 {L2}")
    k("s_mov_b32 s8, s40", "s_and_b32 s9, s41, 0xffff", "s_sub_u32 s13, s2, 30", f"s_branch {Lload}")
    k(f"{L2}:")
    k("s_mov_b32 s8, s42", "s_and_b32 s9, s43, 0xffff", "s_sub_u32 s13, s2, 57", "s_mov_b32 s21, 7", f"s_branch {Lload}")
    k(f"{L3}:")
    k("s_mov_b32 s12, 1280", "s_mov_b32 s15, 2", "s_mov_b32 s16, 13108", "s_mov_b32 s17, 5", f"s_mov_b32 s19, {5*1024}")
    k(f"s_cmp_ge_u32 s2, 94", f"s_cbranch_scc1 {L4}")
    k("s_mov_b32 s8, s36", "s_and_b32 s9, s37, 0xffff", f"s_mov_b32 s10, {640*1280}", "s_sub_u32 s13, s2, 84",
      f"s_mov_b32 s18, {20*5*1024}", f"s_mov_b32 s20, {WOF}", f"s_branch {Lload}")
    k(f"{L4}:")
    k("s_cmp_ge_u32 s22, 9", f"s_cbranch_scc1 {Lend}")
    k("s_mov_b32 s8, s44", "s_and_b32 s9, s45, 0xffff", f"s_mov_b32 s10, {1728*1280}",
      "s_sub_u32 s23, s2, 94", "s_mul_i32 s24, s23, 6554", "s_lshr_b32 s24, s24, 16",
      "s_mul_i32 s25, s24, 10", "s_sub_u32 s13, s23, s25", "s_mul_i32 s14, s24, 576",
      f"s_mov_b32 s18, {54*5*1024}", f"s_mov_b32 s20, {WDF}")
    k(f"{Lload}:")
    k("v_lshrrev_b32 v3, 3, v1", "v_mul_lo_u32 v3, v3, s12", "v_and_b32 v4, 7, v1", "v_lshl_add_u32 v3, v4, 4, v3")
    k("s_lshl_b32 s23, s22, 6", "s_add_u32 s14, s14, s23")
    k("s_mul_i32 s24, s14, s12", "s_lshl_b32 s25, s13, 7", "s_add_u32 s24, s24, s25")
    k("s_lshl_b32 s25, s12, 3", "s_lshl_b32 s26, s22, 13")
    for i in range(8):
        k(f"s_add_u32 m0, s26, {i*1024}", "s_nop 0", "buffer_load_dwordx4 v3, s[8:11], s24 offen lds", "s_add_u32 s24, s24, s25")
    Lq = k.label("q"); Lsum = k.label("sum"); Lcs = k.label("cs")
    F = 16
    k("v_bfe_u32 v4, v1, 2, 2", "v_and_b32 v5, 3, v1", "v_lshrrev_b32 v6, 4, v1", "v_lshlrev_b32 v12, 4, v1")
    k("s_mov_b32 s27, 0x3f803f80")
    for f in range(4): k(f"v_mov_b32 v{8+f}, 0")
    k("s_cmp_eq_u32 s15, 0", f"s_cbranch_scc1 {Lq}")
    k("v_lshl_add_u32 v7, v6, 3, v4", "v_lshlrev_b32 v7, 7, v7", "v_lshl_add_u32 v7, v5, 3, v7", "v_add_u32 v7, s26, v7")
    k("s_waitcnt vmcnt(0)")
    for t in range(2):
        for j in range(4):
            for h in range(2):
                k(f"ds_read_b64_tr_b16 {vr(F+(t*4+j)*4+2*h,2)}, v7 offset:{t*4096+h*512+j*32}")
    k("s_lshr_b32 s28, s14, 5", "s_mul_i32 s28, s28, s19", "s_add_u32 s28, s28, s20", "s_lshl_b32 s29, s21, 10", "s_add_u32 s28, s28, s29")
    for j in range(4):
        k(f"s_lshl_b32 s29, s13, 2", f"s_add_u32 s29, s29, {j}", "s_mul_i32 s30, s29, s16", "s_lshr_b32 s30, s30, 16",
          "s_mul_i32 s31, s30, s17", "s_sub_u32 s31, s29, s31", "s_mul_i32 s30, s30, s18", "s_lshl_b32 s31, s31, 10",
          f"s_add_u32 s{52+j}, s28, s30", f"s_add_u32 s{52+j}, s{52+j}, s31")
    k("s_waitcnt lgkmcnt(0)")
    for t in range(2):
        for j in range(4):
            k(f"buffer_store_dwordx4 {vr(F+(t*4+j)*4,4)}, v12, s[4:7], s{52+j} offen")
            if t == 0: k(f"s_add_u32 s{52+j}, s{52+j}, s19")
    k("s_cmp_eq_u32 s15, 2", f"s_cbranch_scc1 {Lend}")
    k(f"s_branch {Lsum}")
    k(f"{Lq}:")
    k("v_lshrrev_b32 v7, 1, v6", "v_lshl_add_u32 v7, v7, 3, v4", "v_lshlrev_b32 v7, 7, v7", "v_lshl_add_u32 v7, v5, 3, v7",
      "v_and_b32 v13, 1, v6", "v_lshl_add_u32 v7, v13, 5, v7", "v_add_u32 v7, s26, v7")
    k("s_waitcnt vmcnt(0)")
    for t in range(2):
        for s in range(2):
            for nb in range(2):
                for h in range(2):
                    k(f"ds_read_b64_tr_b16 {vr(F+(t*4+s*2+nb)*4+2*h,2)}, v7 offset:{t*4096+s*2048+h*512+nb*64}")
    k("s_lshr_b32 s28, s13, 1", "s_mul_i32 s28, s28, 163840", "s_lshl_b32 s29, s22, 14", "s_add_u32 s28, s28, s29",
      "s_and_b32 s29, s13, 1", "s_lshl_b32 s29, s29, 11", "s_add_u32 s28, s28, s29", f"s_add_u32 s28, s28, {WQKVF}")
    k("s_waitcnt lgkmcnt(0)")
    for t in range(2):
        for s in range(2):
            for nb in range(2):
                k(f"buffer_store_dwordx4 {vr(F+(t*4+s*2+nb)*4,4)}, v12, s[4:7], s28 offen offset:{nb*1024}")
            k("s_add_u32 s28, s28, 4096")
    k(f"{Lsum}:")
    for t in range(2):
        for r in range(4):
            for f in range(4):
                k(f"v_dot2c_f32_bf16 v{8+f}, s27, v{F+(t*4+f)*4+r}")
    k("v_lshlrev_b32 v13, 2, v1", "v_add_u32 v13, s26, v13", "s_nop 2")
    for f in range(4): k(f"ds_write_b32 v13, v{8+f} offset:{f*256}")
    k("s_waitcnt lgkmcnt(0)", "s_barrier")
    k("s_cmp_lg_u32 s22, 0", f"s_cbranch_scc1 {Lend}")
    Lq2 = k.label("q2"); Lred = k.label("red")
    k("s_cmp_eq_u32 s15, 0", f"s_cbranch_scc1 {Lq2}")
    k("v_and_b32 v13, 15, v1", "v_lshlrev_b32 v13, 2, v13", "v_lshl_add_u32 v13, v6, 8, v13")
    k("v_add_u32 v14, 64, v13", "v_add_u32 v15, 128, v13", "v_add_u32 v7, 192, v13")
    k("s_lshl_b32 s28, s13, 2", "v_add_u32 v2, s28, v6", "v_mul_u32_u24 v3, 9363, v2", "v_lshrrev_b32 v3, 16, v3", "v_mul_u32_u24 v3, 7, v3",
      "v_add3_u32 v2, v2, v3, s21", "v_and_b32 v3, 15, v1", "v_lshl_add_u32 v2, v2, 4, v3", "v_lshlrev_b32 v2, 2, v2", f"v_add_u32 v2, {CSGU}, v2")
    k(f"s_branch {Lred}")
    k(f"{Lq2}:")
    k("v_and_b32 v13, 31, v1", "v_lshlrev_b32 v13, 2, v13", "v_lshrrev_b32 v14, 5, v1", "v_lshl_add_u32 v13, v14, 8, v13")
    k("v_add_u32 v14, 128, v13", "v_add_u32 v15, 512, v13", "v_add_u32 v7, 640, v13")
    k("s_lshl_b32 s28, s13, 8", f"s_add_u32 s28, s28, {CSQKV}", "v_lshlrev_b32 v2, 2, v1", "v_add_u32 v2, s28, v2")
    k(f"{Lred}:")
    bases = [13, 14, 15, 7]
    for w in range(8):
        for q in range(4): k(f"ds_read_b32 v{16+w*4+q}, v{bases[q]} offset:{w*8192}")
    for q in range(4): k(f"v_add_u32 v{bases[q]}, 0x10000, v{bases[q]}")
    for w in range(8, 10):
        for q in range(4): k(f"ds_read_b32 v{16+w*4+q}, v{bases[q]} offset:{(w-8)*8192}")
    k("s_waitcnt lgkmcnt(0)")
    n = 40
    while n > 1:
        h = n // 2
        for i in range(h): k(f"v_add_f32 v{16+i}, v{16+i}, v{16+n-h+i}")
        n -= h
    k("buffer_store_dword v16, v2, s[4:7], 0 offen")
    k(f"s_branch {Lend}")
    k(f"{Lx}:")
    k("s_mov_b32 s8, s32", "s_and_b32 s9, s33, 0xffff", f"s_mov_b32 s10, {2048*1280}")
    k("s_sub_u32 s13, s2, 124")
    k("v_lshrrev_b32 v3, 3, v1", "v_and_b32 v4, 7, v1", "v_mul_u32_u24 v5, 1280, v3", "v_lshl_add_u32 v5, v4, 4, v5",
      "v_lshlrev_b32 v6, 9, v4", "v_lshl_add_u32 v6, v3, 4, v6")
    k(f"s_mul_i32 s24, s13, {64*1280}", "s_lshl_b32 s25, s22, 7", "s_add_u32 s24, s24, s25")
    for i in range(8):
        k(f"buffer_load_dwordx4 {vr(16+4*i,4)}, v5, s[8:11], s24 offen", f"s_add_u32 s24, s24, {8*1280}")
    k(f"s_mul_i32 s24, s13, {2*40960}", "s_lshl_b32 s25, s22, 12", "s_add_u32 s24, s24, s25", f"s_add_u32 s24, s24, {XF}", "s_add_u32 s25, s24, 40960")
    for i in range(8):
        k(f"s_waitcnt vmcnt({7 if i else 7})" if False else f"s_waitcnt vmcnt(7)")
        k(f"buffer_store_dwordx4 {vr(16+4*i,4)}, v6, s[4:7], s{24+(i>>2)} offen offset:{(i&3)*128}")
    k(f"{Lend}:")
    k("s_endpgm")
    return k
```

```python
from fw import *
from k_prep import ws_srd
import math
QSCALE = (20 ** -0.5) * math.log2(math.e)
import struct
def f2u(x): return struct.unpack("<I", struct.pack("<f", x))[0]

def stats_finalize32(k, vsum, vsq, vt, vout):
    k("s_nop 2")
    k(f"v_mov_b32 v{vt}, v{vsum}", f"v_mov_b32 v{vt+1}, v{vsq}", "s_nop 1")
    k(f"v_permlane32_swap_b32 v{vt}, v{vsum}", f"v_permlane32_swap_b32 v{vt+1}, v{vsq}", "s_nop 1")
    k(f"v_add_f32 v{vsum}, v{vsum}, v{vt}", f"v_add_f32 v{vsq}, v{vsq}, v{vt+1}")
    stats_math(k, vsum, vsq, vout)

def stats_math(k, vsum, vsq, vout):
    k(f"v_mul_f32 v{vsum}, {hex(f2u(1/640))}, v{vsum}", f"v_mul_f32 v{vsq}, {hex(f2u(1/640))}, v{vsq}")
    k(f"v_fma_f32 v{vsq}, -v{vsum}, v{vsum}, v{vsq}", f"v_max_f32 v{vsq}, 0, v{vsq}", f"v_add_f32 v{vsq}, {hex(f2u(1e-5))}, v{vsq}")
    k(f"v_rsq_f32 v{vout}, v{vsq}", "s_nop 0", f"v_mul_f32 v{vout+1}, v{vsum}, v{vout}", f"v_sub_f32 v{vout+1}, 0, v{vout+1}")

def gen_qkv(groups=None):
    k = K("qkv_kernel", 240, 256, 163840, nvgpr=256, nagpr=32)
    X = 16; ACC = 176; NS = 40
    groups = groups or [2] * 20
    Lend = k.label("end"); LV = k.label("v")
    k("s_cmp_ge_u32 s2, 240", f"s_cbranch_scc1 {Lend}")
    k("s_load_dwordx2 s[48:49], s[0:1], 72")
    k("v_lshrrev_b32 v2, 6, v0", "v_and_b32 v1, 63, v0", "v_lshlrev_b32 v3, 4, v1", "v_readfirstlane_b32 s22, v2")
    k("s_and_b32 s12, s2, 7", "s_lshr_b32 s13, s2, 3", "s_lshl_b32 s12, s12, 1",
      "s_cmp_ge_u32 s13, 15", "s_cselect_b32 s14, 15, 0", "s_addc_u32 s12, s12, 0", "s_sub_u32 s13, s13, s14")
    k("s_lshl_b32 s12, s12, 2", "s_add_u32 s12, s12, s22")
    k("s_mul_i32 s16, s12, 40960", f"s_add_u32 s16, s16, {XF}")
    k("s_lshl_b32 s18, s22, 10")
    k("s_mul_i32 s17, s13, 163840", f"s_add_u32 s17, s17, {WQKVF}", "s_add_u32 s17, s17, s18")
    k("s_mov_b32 s27, 0x3f803f80")
    k("s_waitcnt lgkmcnt(0)")
    ws_srd(k)
    cnt = [0]
    def issue(s):
        k(f"buffer_load_dwordx4 {vr(X+4*s,4)}, v3, s[4:7], s16 offen offset:{(s&3)*1024}")
        if (s & 3) == 3: k("s_add_u32 s16, s16, 4096")
        k(f"s_add_u32 m0, s18, {s*4096}")
        k("s_nop 0")
        k(f"buffer_load_dwordx4 v3, s[4:7], s17 offen lds")
        k("s_add_u32 s17, s17, 4096")
        cnt[0] += 2
    PRE = 30
    for s in range(PRE): issue(s)
    for i in range(64): k(f"v_mov_b32 v{ACC+i}, 0")
    for i in range(4, 8): k(f"v_mov_b32 v{i}, 0")
    k("v_and_b32 v8, 31, v1", "v_lshrrev_b32 v9, 5, v1")
    k("s_cmp_ge_u32 s13, 10", f"s_cbranch_scc1 {LV}")

    def mainloop(trans, cs_issue):
        c = cnt[0]
        bounds = []
        e = 0
        for g in groups:
            e += g; bounds.append(e)
        assert e == NS
        covered = 0
        def sync_for(s):
            nonlocal covered
            if s < covered: return
            e = next(b for b in bounds if b > s)
            k(f"s_waitcnt vmcnt({max(0, c - 2*e) if c - 2*e < 63 else 63})" if True else "")
            k("s_barrier")
            covered = e
        def rd(s):
            hi = s >= 16
            base = "v3" if s < 16 else ("v14" if s < 32 else "v15")
            off = (s % 16) * 4096
            for b in range(4):
                k(f"ds_read_b128 {ar((s&1)*16+4*b,4)}, {base} offset:{off+b*1024}")
        k("v_add_u32 v14, 0x10000, v3", "v_add_u32 v15, 0x20000, v3")
        sync_for(0); rd(0)
        extra = 0
        for s in range(NS):
            if s + 1 < NS:
                if s + 1 >= covered:
                    e = next(b for b in bounds if b > s + 1)
                    n = c + extra - 2 * e
                    k(f"s_waitcnt vmcnt({min(63, max(0, n))})", "s_barrier")
                    covered = e
                rd(s + 1)
                k("s_waitcnt lgkmcnt(4)")
            else:
                k("s_waitcnt lgkmcnt(0)")
            for b in range(4):
                w = ar((s&1)*16+4*b, 4); x = vr(X+4*s, 4); d = vr(ACC+16*b, 16)
                k(f"v_mfma_f32_32x32x16_bf16 {d}, {w}, {x}, {d}" if trans else f"v_mfma_f32_32x32x16_bf16 {d}, {x}, {w}, {d}")
                k(f"v_dot2c_f32_bf16 v{4+(b&1)}, s27, v{X+4*s+b}", f"v_dot2c_f32_bf16 v{6+(b&1)}, v{X+4*s+b}, v{X+4*s+b}")
                if b == 1 and s + PRE < NS:
                    cnt[0] = c; issue(s + PRE); c = cnt[0]
            if s == 20:
                extra = cs_issue()
        k("s_nop 2", "v_add_f32 v4, v4, v5", "v_add_f32 v6, v6, v7")
        stats_finalize32(k, 4, 6, 10, 12)

    save = cnt[0]
    k("s_mov_b32 s19, 1280", f"s_mov_b32 s20, {QW}")
    k("s_cmp_ge_u32 s13, 5", "s_cselect_b32 s19, 2560, s19", f"s_cselect_b32 s20, {KV}, s20", "s_cselect_b32 s21, 160, 0",
      f"s_cselect_b32 s28, 1.0, {hex(f2u(QSCALE))}")
    k("s_lshl_b32 s23, s13, 5", "s_sub_u32 s23, s23, s21")
    k("s_lshl_b32 s24, s19, 6")
    k("s_mul_i32 s25, s12, s19", "s_add_u32 s20, s20, s25")
    for i in range(5):
        a = 240 + i
        k(f"v_add_u32 v10, s23, v9", f"v_add_u32 v10, {2*i}, v10", "v_mul_u32_u24 v11, 13108, v10", "v_lshrrev_b32 v11, 16, v11",
          "v_mul_u32_u24 v12, 5, v11", "v_sub_u32 v10, v10, v12",
          f"v_mul_lo_u32 v{a}, v11, s24",
          "v_lshrrev_b32 v11, 1, v10", "v_lshlrev_b32 v11, 9, v11", "v_and_b32 v12, 1, v10", "v_lshl_add_u32 v11, v12, 3, v11",
          "v_lshlrev_b32 v12, 4, v8", "v_lshlrev_b32 v13, 3, v8", "v_cmp_eq_u32 vcc, 4, v10", "s_nop 1", "v_cndmask_b32 v12, v12, v13, vcc",
          f"v_add3_u32 v{a}, v{a}, v11, v12")
    def cs_qk():
        k("s_lshl_b32 s26, s13, 9", f"s_add_u32 s26, s26, {CSQKV}", "v_lshlrev_b32 v11, 4, v9")
        for j in range(16):
            k(f"buffer_load_dwordx4 {vr(X+4*j,4)}, v11, s[4:7], s26 offen offset:{j*32}")
        return 16
    mainloop(True, cs_qk)
    k("v_mul_f32 v12, s28, v12", "v_mul_f32 v13, s28, v13")
    k("s_lshl_b32 s24, s24, 1")
    k("s_waitcnt vmcnt(0)", "s_nop 7")
    for j in range(16):
        a = ACC + 4 * j; c = X + 4 * j
        for h in range(2):
            k(f"v_pk_mul_f32 {vr(a+2*h,2)}, {vr(a+2*h,2)}, v[12:13] op_sel:[0,0] op_sel_hi:[1,0]")
        for h in range(2):
            k(f"v_pk_fma_f32 {vr(a+2*h,2)}, {vr(c+2*h,2)}, v[12:13], {vr(a+2*h,2)} op_sel:[0,1,0] op_sel_hi:[1,1,1]")
        k(f"v_cvt_pk_bf16_f32 v{a}, v{a}, v{a+1}", f"v_cvt_pk_bf16_f32 v{a+1}, v{a+2}, v{a+3}")
        k(f"buffer_store_dwordx2 {vr(a,2)}, v{240+j%5}, s[4:7], s20 offen")
        if j % 5 == 4: k("s_add_u32 s20, s20, s24")
    k(f"s_branch {Lend}")
    k(f"{LV}:")
    cnt[0] = save
    k("s_sub_u32 s23, s13, 10", "s_lshl_b32 s23, s23, 7")
    k("s_mul_i32 s20, s12, 2560", f"s_add_u32 s20, s20, {KV+1280}", f"s_mov_b32 s24, {64*2560}")
    for b in range(4):
        a = 240 + b
        k(f"v_add_u32 v10, s23, v8", f"v_add_u32 v10, {32*b}, v10", "v_mul_u32_u24 v11, 3277, v10", "v_lshrrev_b32 v11, 16, v11",
          "v_mul_u32_u24 v12, 20, v11", "v_sub_u32 v10, v10, v12", f"v_mul_lo_u32 v{a}, v11, s24",
          "v_mul_u32_u24 v11, 320, v9", "v_lshl_add_u32 v11, v10, 4, v11", f"v_add_u32 v{a}, v{a}, v11")
    def cs_v():
        k("s_lshl_b32 s26, s13, 9", f"s_add_u32 s26, s26, {CSQKV}", "v_lshlrev_b32 v11, 2, v8")
        for b in range(4):
            k(f"buffer_load_dword v{X+2*b}, v11, s[4:7], s26 offen offset:{b*128}")
        return 4
    mainloop(False, cs_v)
    k("s_lshl_b32 s26, s22, 8", "v_lshl_add_u32 v10, v8, 2, s26", "v_lshl_add_u32 v11, v9, 4, s26")
    k("ds_write_b32 v10, v12", "ds_write_b32 v10, v13 offset:128", "s_waitcnt lgkmcnt(0)")
    RS = X + 16; NM = X + 32
    for gi in range(4):
        k(f"ds_read_b128 {vr(RS+4*gi,4)}, v11 offset:{gi*32}", f"ds_read_b128 {vr(NM+4*gi,4)}, v11 offset:{128+gi*32}")
    k("s_waitcnt vmcnt(0) lgkmcnt(0)", "s_nop 4")
    for b in range(4):
        a = ACC + 16 * b
        for h in range(8):
            k(f"v_pk_mul_f32 {vr(a+2*h,2)}, {vr(a+2*h,2)}, {vr(RS+2*h,2)}")
        for h in range(8):
            k(f"v_pk_fma_f32 {vr(a+2*h,2)}, {vr(NM+2*h,2)}, {vr(X+2*b,2)}, {vr(a+2*h,2)} op_sel:[0,0,0] op_sel_hi:[1,0,1]")
        for h in range(8):
            k(f"v_cvt_pk_bf16_f32 v{a+h}, v{a+2*h}, v{a+2*h+1}")
        k(f"buffer_store_dwordx4 {vr(a,4)}, v{240+b}, s[4:7], s20 offen", f"buffer_store_dwordx4 {vr(a+4,4)}, v{240+b}, s[4:7], s20 offen offset:640")
    k(f"{Lend}:")
    k("s_endpgm")
    return k
```

```python
import sys
from fw import *
from k_prep import gen_prep
from k_qkv import gen_qkv
from k_attn import gen_attn
from k_gemm16 import gen_gu, gen_proj
NAME = "interleave_layers__mha_block__glu_gated_reglu__prompt"
def build(out):
    prep, qkv, attn, gu = gen_prep(), gen_qkv(), gen_attn(), gen_gu()
    wo = gen_proj("wo_kernel", 20, OF, WOF, False)
    dn = gen_proj("down_kernel", 54, HF, WDF, False)
    dnf = gen_proj("downf_kernel", 54, HF, WDF, True)
    order = [prep, qkv, attn, wo, gu, dn, qkv, attn, wo, gu, dnf]
    hdr = open(f"cdna_kernels/{NAME}.s.ref").read().split("; Override launch")[0]
    txt = hdr + "\n".join(k.launch_line() for k in order) + "\n"
    txt += '.amdgcn_target "amdgcn-amd-amdhsa--gfx950"\n'
    seen = []
    for k in order:
        if k not in seen:
            seen.append(k); txt += k.text()
    open(out, "w").write(txt)
if __name__ == "__main__":
    build(sys.argv[1] if len(sys.argv) > 1 else f"cdna_kernels/{NAME}.s")
```

```python
import os
DIAG = bool(os.environ.get("DIAG"))
STAMPS = 0x4000000
class K:
    def __init__(self, name, grid, block, lds, nvgpr, nagpr=0, nsgpr=96):
        self.name = name; self.grid = grid; self.block = block; self.lds = lds
        self.nvgpr = nvgpr; self.nagpr = nagpr; self.nsgpr = nsgpr
        self.lines = []
        self.nlab = 0
        self.nstamp = 0
        if DIAG: self.nsgpr = 100
    def __call__(self, s, *more):
        for t in (s,) + more:
            for ln in t.split("\n"):
                ln = ln.strip()
                if not ln: continue
                if ln.endswith(":") : self.lines.append(ln)
                else: self.lines.append("    " + ln)
    def stamp(self, real=False):
        if not DIAG: return
        i = self.nstamp; self.nstamp += 1
        assert i < 16
        self(f"{'s_memrealtime' if real else 's_memtime'} s[{64+2*i}:{65+2*i}]")
    def stamp_flush(self, nwaves, wave_sreg="s22"):
        if not DIAG: return
        self("s_waitcnt vmcnt(0)")
        self.stamp(); self.stamp(True)
        self("s_waitcnt lgkmcnt(0)", "s_mov_b64 exec, 1")
        self(f"s_mul_i32 s60, s2, {nwaves}", f"s_add_u32 s60, s60, {wave_sreg}", "s_lshl_b32 s60, s60, 6")
        self("s_load_dwordx2 s[62:63], s[0:1], 64", "s_waitcnt lgkmcnt(0)", "s_lshr_b32 s61, s62, 9", "s_and_b32 s61, s61, 15", "s_lshl_b32 s61, s61, 20", "s_add_u32 s60, s60, s61")
        self(f"s_add_u32 s56, s48, {STAMPS}", "s_addc_u32 s57, s49, 0", "s_and_b32 s57, s57, 0xffff", "s_mov_b32 s58, 0x1000000", "s_mov_b32 s59, 0x00020000")
        for i in range(16):
            self(f"v_mov_b32 v0, s{64+2*i}" if i < self.nstamp else "v_mov_b32 v0, 0", f"buffer_store_dword v0, off, s[56:59], s60 offset:{4*i}")
        self("s_waitcnt vmcnt(0)")
    def label(self, base):
        self.nlab += 1
        return f"L_{self.name}_{base}_{self.nlab}"
    def text(self):
        acc = (self.nvgpr + 3) // 4 * 4
        nfv = acc + self.nagpr if self.nagpr else self.nvgpr
        return f""".text
.globl {self.name}
.p2align 8
.type {self.name},@function
{self.name}:
""" + "\n".join(self.lines) + f"""
.section .rodata,"a"
.p2align 6
.amdhsa_kernel {self.name}
  .amdhsa_next_free_vgpr {nfv}
  .amdhsa_next_free_sgpr {self.nsgpr}
  .amdhsa_accum_offset {acc}
  .amdhsa_group_segment_fixed_size 0
  .amdhsa_kernarg_size 80
  .amdhsa_user_sgpr_count 2
  .amdhsa_user_sgpr_kernarg_segment_ptr 1
  .amdhsa_system_sgpr_workgroup_id_x 1
  .amdhsa_float_denorm_mode_32 3
.end_amdhsa_kernel
"""
    def launch_line(self):
        return f"; @launch kernel={self.name} grid=({self.grid},1,1) block=({self.block},1,1) lds={self.lds}"

def vr(a, n): return f"v[{a}:{a+n-1}]" if n > 1 else f"v{a}"
def ar(a, n): return f"a[{a}:{a+n-1}]" if n > 1 else f"a{a}"
def sr(a, n): return f"s[{a}:{a+n-1}]" if n > 1 else f"s{a}"

XF    = 0x0000000
QW    = 0x0280000
KV    = 0x0500000
OF    = 0x0A00000
HF    = 0x0C80000
WQKVF = 0x1340000
WGUF  = 0x1598000
WOF   = 0x19F8000
WDF   = 0x1AC0000
CSQKV = 0x1CDC000
CSGU  = 0x1CDE000
STATS = 0x1CE4000
WS_USED = 0x1E00000
```

```python
import os
DIAG = bool(os.environ.get("DIAG"))
STAMPS = 0x4000000
class K:
    def __init__(self, name, grid, block, lds, nvgpr, nagpr=0, nsgpr=96):
        self.name = name; self.grid = grid; self.block = block; self.lds = lds
        self.nvgpr = nvgpr; self.nagpr = nagpr; self.nsgpr = nsgpr
        self.lines = []
        self.nlab = 0
        self.nstamp = 0
        if DIAG: self.nsgpr = 100
    def __call__(self, s, *more):
        for t in (s,) + more:
            for ln in t.split("\n"):
                ln = ln.strip()
                if not ln: continue
                if ln.endswith(":") : self.lines.append(ln)
                else: self.lines.append("    " + ln)
    def stamp(self, real=False):
        if not DIAG: return
        i = self.nstamp; self.nstamp += 1
        assert i < 16
        self(f"{'s_memrealtime' if real else 's_memtime'} s[{64+2*i}:{65+2*i}]")
    def stamp_flush(self, nwaves, wave_sreg="s22"):
        if not DIAG: return
        self("s_waitcnt vmcnt(0)")
        self.stamp(); self.stamp(True)
        self("s_waitcnt lgkmcnt(0)", "s_mov_b64 exec, 1")
        self(f"s_mul_i32 s60, s2, {nwaves}", f"s_add_u32 s60, s60, {wave_sreg}", "s_lshl_b32 s60, s60, 6")
        self("s_load_dwordx2 s[62:63], s[0:1], 64", "s_waitcnt lgkmcnt(0)", "s_lshr_b32 s61, s62, 9", "s_and_b32 s61, s61, 15", "s_lshl_b32 s61, s61, 20", "s_add_u32 s60, s60, s61")
        self(f"s_add_u32 s56, s48, {STAMPS}", "s_addc_u32 s57, s49, 0", "s_and_b32 s57, s57, 0xffff", "s_mov_b32 s58, 0x1000000", "s_mov_b32 s59, 0x00020000")
        for i in range(16):
            self(f"v_mov_b32 v0, s{64+2*i}" if i < self.nstamp else "v_mov_b32 v0, 0", f"buffer_store_dword v0, off, s[56:59], s60 offset:{4*i}")
        self("s_waitcnt vmcnt(0)")
    def rstamp(self, i):
        if DIAG: self(f"s_memrealtime s[{64+2*i}:{65+2*i}]")
    def rflush(self):
        if not DIAG: return
        self("s_waitcnt lgkmcnt(0)", "s_mov_b64 exec, 1")
        self("s_lshl_b32 s60, s2, 3", "s_add_u32 s60, s60, s22", "s_lshl_b32 s60, s60, 6", "s_lshl_b32 s61, s19, 21", "s_add_u32 s60, s60, s61")
        self(f"s_add_u32 s56, s48, {STAMPS + (16 << 20)}", "s_addc_u32 s57, s49, 0", "s_and_b32 s57, s57, 0xffff", "s_mov_b32 s58, 0x1000000", "s_mov_b32 s59, 0x00020000")
        for i in range(16):
            self(f"v_mov_b32 v0, s{64+2*i}", f"buffer_store_dword v0, off, s[56:59], s60 offset:{4*i}")
        self("s_mov_b64 exec, -1")
    def label(self, base):
        self.nlab += 1
        return f"L_{self.name}_{base}_{self.nlab}"
    def text(self):
        acc = (self.nvgpr + 3) // 4 * 4
        nfv = acc + self.nagpr if self.nagpr else self.nvgpr
        return f""".text
.globl {self.name}
.p2align 8
.type {self.name},@function
{self.name}:
""" + "\n".join(self.lines) + f"""
.section .rodata,"a"
.p2align 6
.amdhsa_kernel {self.name}
  .amdhsa_next_free_vgpr {nfv}
  .amdhsa_next_free_sgpr {self.nsgpr}
  .amdhsa_accum_offset {acc}
  .amdhsa_group_segment_fixed_size 0
  .amdhsa_kernarg_size 80
  .amdhsa_user_sgpr_count 2
  .amdhsa_user_sgpr_kernarg_segment_ptr 1
  .amdhsa_system_sgpr_workgroup_id_x 1
  .amdhsa_float_denorm_mode_32 3
.end_amdhsa_kernel
"""
    def launch_line(self):
        return f"; @launch kernel={self.name} grid=({self.grid},1,1) block=({self.block},1,1) lds={self.lds}"

def vr(a, n): return f"v[{a}:{a+n-1}]" if n > 1 else f"v{a}"
def ar(a, n): return f"a[{a}:{a+n-1}]" if n > 1 else f"a{a}"
def sr(a, n): return f"s[{a}:{a+n-1}]" if n > 1 else f"s{a}"

XA  = 0x0000000
STA = 0x0280000
QB  = 0x02A0000
KVB = 0x04A0000
OFB = 0x0AA0000
XB  = 0x0D20000
STB = 0x0FA0000
HFB = 0x0FC0000
MBX = 0x16C0000
SLOT = 0x1700000
WQ  = 0x2E00000
WGU = 0x3080000
WO  = 0x34E0000
WD  = 0x35A8000
CSQ = 0x37C8000
CSG = 0x37CC000
WS_USED = 0x3800000
import struct, math
def f2u(x): return struct.unpack("<I", struct.pack("<f", x))[0]
def ws_srd(k, base=4):
    k(f"s_mov_b32 s{base}, s48", f"s_and_b32 s{base+1}, s49, 0xffff", f"s_mov_b32 s{base+2}, {WS_USED}", f"s_mov_b32 s{base+3}, 0x00020000")
```

```python
from fw import *
import os
E = lambda n, d: int(os.environ.get(n, d))

SA, SB, OA, OB, PA, PB = 40, 56, 72, 88, 104, 112
QA1, QA2, QB1, QB2 = 120, 124, 126, 130
K1 = [132, 138]; K2 = [136, 142]; VV = [144, 152]
AK1, AK2, AV = 26, 28, 30
GK2, GV = 32, 33
NT = 32

def qk(k, S, kb, Q1, Q2, part):
    if part == 0: k(f"v_mfma_f32_32x32x16_bf16 {vr(S,16)}, {vr(K1[kb],4)}, {vr(Q1,4)}, 0")
    else: k(f"v_mfma_f32_32x32x8_bf16 {vr(S,16)}, {vr(K2[kb],2)}, {vr(Q2,2)}, {vr(S,16)}")
def pv(k, O, vb, P, i, first=False):
    k(f"v_mfma_f32_32x32x16_bf16 {vr(O,16)}, {vr(VV[vb]+4*i,4)}, {vr(P+4*i,4)}, {0 if first else vr(O,16)}")
def softmax_ops(S, P):
    e = lambda i: f"v_exp_f32 v{S+i}, v{S+i}"
    c = lambda i: f"v_cvt_pk_bf16_f32 v{P+i}, v{S+2*i}, v{S+2*i+1}"
    ops = [e(0), e(1), e(2), e(3), c(0)]
    for i in range(2, 8): ops += [e(2*i), e(2*i+1), c(i-1)]
    return ops + [c(7)]
def rowmax(k, S, t0):
    k(f"v_max3_f32 v{t0}, v{S}, v{S+1}, v{S+2}")
    for i in range(3, 15, 2): k(f"v_max3_f32 v{t0}, v{t0}, v{S+i}, v{S+i+1}")
    k(f"v_max_f32 v{t0}, v{t0}, v{S+15}")
def crossmax(k, t0, t1):
    k(f"v_mov_b32 v{t1}, v{t0}", "s_nop 1", f"v_permlane32_swap_b32 v{t1}, v{t0}", "s_nop 0", f"v_max_f32 v{t0}, v{t0}, v{t1}")

def phase_attn(k, poll, signal, slot, SEG, SC1):
    Lnp = k.label("np")
    k("s_setprio 0")
    k("s_lshr_b32 s24, s22, 2")
    k("s_lshl_b32 s25, s17, 3", "s_lshl_b32 s26, s23, 1", "s_add_u32 s25, s25, s26")
    k("s_lshl_b32 s26, s16, 6", "s_add_u32 s27, s26, s25")
    k("s_lshl_b32 s20, s27, 10", "s_add_u32 s20, s20, s18", f"s_add_u32 s20, s20, {QB}")
    k("s_mul_i32 s21, s27, 3072", "s_add_u32 s21, s21, s18", f"s_add_u32 s21, s21, {KVB+2560}")
    k("s_mul_i32 s26, s26, 3072", "s_add_u32 s26, s26, s18", f"s_add_u32 s26, s26, {KVB}")
    k(f"s_mul_i32 s28, s24, {NT*3072}", "s_add_u32 s28, s28, s26", "s_add_u32 s28, s28, s31")
    k("s_mul_i32 s27, s24, 73728", "s_add_u32 s29, s27, s31")
    k("v_and_b32 v10, 31, v1", "v_lshrrev_b32 v11, 5, v1", "v_lshlrev_b32 v12, 4, v10")
    k(f"v_lshlrev_b32 v{GK2}, 9, v11", f"v_sub_u32 v{GK2}, {2560+8}, v{GK2}", f"v_add_u32 v{GK2}, v{GK2}, v12")
    k("v_bfe_u32 v13, v1, 2, 2", "v_lshl_add_u32 v13, v11, 2, v13", "v_lshlrev_b32 v13, 4, v13")
    k("v_and_b32 v14, 1, v1", "v_lshlrev_b32 v14, 9, v14", "v_bfe_u32 v15, v1, 1, 1", "v_lshl_add_u32 v14, v15, 3, v14")
    k("v_and_b32 v15, 3, v1", "v_min_u32 v15, 1, v15", "v_lshlrev_b32 v15, 3, v15", "v_add_u32 v15, 1024, v15")
    k(f"v_cndmask_b32 v14, v15, v14, s[36:37]", f"v_add3_u32 v{GV}, v13, v14, 64", f"v_add_u32 v{GV}, 960, v{GV}")
    k(f"v_add_u32 v{AK1}, s27, v3", f"v_add_u32 v{AK2}, s27, v{GK2}", f"v_add_u32 v{AV}, s27, v{GV}")
    for a in (AK1, AK2, AV): k(f"v_add_u32 v{a+1}, 36864, v{a}")
    for r in (QA2, QA2+1, QB2, QB2+1): k(f"v_mov_b32 v{r}, 0")
    k("s_cmp_lg_u32 s22, 7", f"s_cbranch_scc1 {Lnp}")
    k("s_lshl_b32 s53, s16, 3", "s_add_u32 s53, s53, s17"); poll(k, 1, "s53", 16)
    k(f"{Lnp}:")
    k("s_barrier")
    k.rstamp(4)
    k(f"buffer_load_dwordx4 {vr(K1[0],4)}, v3, s[4:7], s26 offen {SC1}", f"buffer_load_dwordx2 {vr(K2[0],2)}, v{GK2}, s[4:7], s26 offen {SC1}")
    k(f"buffer_load_dwordx4 {vr(QA1,4)}, v3, s[4:7], s20 offen {SC1}", f"buffer_load_dwordx4 {vr(QB1,4)}, v3, s[4:7], s20 offen offset:1024 {SC1}")
    k("s_mov_b64 exec, s[32:33]")
    k(f"buffer_load_dwordx2 {vr(QA2,2)}, v12, s[4:7], s21 offen {SC1}", f"buffer_load_dwordx2 {vr(QB2,2)}, v12, s[4:7], s21 offen offset:3072 {SC1}")
    k("s_mov_b64 exec, -1")
    nd = [0]
    def dma():
        r = nd[0]; nd[0] += 1
        if r < 24:
            k(f"s_add_u32 m0, s29, {(r % 18)*4096}", "s_nop 0", f"buffer_load_dwordx4 v3, s[4:7], s28 offen {SC1} lds", "s_add_u32 s28, s28, 4096")
        else:
            if r == 24: k("s_lshl_b32 s29, s22, 10", "s_mul_i32 s28, s15, 102400", f"s_add_u32 s28, s28, {WO}", "s_add_u32 s28, s28, s29")
            k(f"s_add_u32 m0, s29, {slot(8*r)*1024}", "s_nop 0", "buffer_load_dwordx4 v3, s[4:7], s28 offen lds", "s_add_u32 s28, s28, 8192")
    dma(); dma(); dma()
    k("s_waitcnt vmcnt(3)")
    qk(k, SA, 0, QA1, QA2, 0); qk(k, SA, 0, QA1, QA2, 1); qk(k, SB, 0, QB1, QB2, 0); qk(k, SB, 0, QB1, QB2, 1)
    k("s_nop 9")
    for S, Q2 in ((SA, QA2), (SB, QB2)):
        rowmax(k, S, PA); crossmax(k, PA, PA+1)
        k(f"v_sub_f32 v{PA}, 0, v{PA}", "s_mov_b64 exec, s[34:35]", f"v_lshrrev_b32 v{Q2}, 16, v{PA}", "s_mov_b64 exec, -1")
    def off(t): return (t % 24) // 12, (t % 12) * 3072
    def ldK(t):
        h, o = off(t)
        k(f"ds_read_b64 {vr(K2[t&1],2)}, v{AK2+h} offset:{o}", f"ds_read_b128 {vr(K1[t&1],4)}, v{AK1+h} offset:{o}")
    def ldV(t):
        h, o = off(t)
        for q in range(4): k(f"ds_read_b64_tr_b16 {vr(VV[t&1]+2*q,2)}, v{AV+h} offset:{o+128*q}")
    k("s_waitcnt vmcnt(0)", "s_barrier")
    k("s_setprio 1")
    ldK(0); ldV(0); ldK(1)
    k("s_waitcnt lgkmcnt(6)")
    qk(k, SA, 0, QA1, QA2, 0); qk(k, SA, 0, QA1, QA2, 1)
    k("s_nop 11")
    allowed = [18]
    def phase(ops, mf):
        pos = {0: 0, 5: 1, 11: 2, 17: 3}
        for i, o in enumerate(ops):
            if i in pos and pos[i] < len(mf): mf[pos[i]]()
            k(o)
            if i in (2, 14) and nd[0] < allowed[0]: dma()
    BAR = {2: (4, 18), 9: (0, 24), 18: (0, 30), 26: (63, 36)}
    covered = 3
    for t in range(NT):
        mf = [lambda: qk(k, SB, t&1, QB1, QB2, 0), lambda: qk(k, SB, t&1, QB1, QB2, 1)]
        if t > 0: mf += [lambda: pv(k, OB, (t-1)&1, PB, 0, t == 1), lambda: pv(k, OB, (t-1)&1, PB, 1)]
        phase(softmax_ops(SA, PA), mf)
        if t in BAR:
            n, al = BAR[t]
            k(f"s_waitcnt vmcnt({n}) lgkmcnt(0)", "s_barrier", "s_setprio 1")
            covered = max(covered, min(24, nd[0] - n))
            assert al <= 18 or (t + 1) * 3072 >= (al - 18) * 4096, (t, al)
            allowed[0] = al
        else:
            k("s_waitcnt lgkmcnt(0)")
        if t + 1 in BAR or t + 2 == NT: k("s_setprio 0")
        assert covered * 4096 >= min(t + 3, NT) * 3072, (t, covered)
        if t + 1 < NT: ldV(t + 1)
        if t + 2 < NT: ldK(t + 2)
        mf = [lambda: qk(k, SA, (t+1)&1, QA1, QA2, 0), lambda: qk(k, SA, (t+1)&1, QA1, QA2, 1)] if t + 1 < NT else [lambda: None]
        mf += [lambda: pv(k, OA, t&1, PA, 0, t == 0), lambda: pv(k, OA, t&1, PA, 1)]
        phase(softmax_ops(SB, PB), mf)
    assert nd[0] == 36
    k("s_nop 1")
    pv(k, OB, (NT-1)&1, PB, 0); pv(k, OB, (NT-1)&1, PB, 1)
    k.rstamp(5)
    Lw = k.label("w"); Lr = k.label("r")
    k("s_mul_i32 s27, s22, 3072", "s_xor_b32 s28, s22, 4", "s_mul_i32 s28, s28, 3072", "v_add_u32 v10, s27, v3", "v_add_u32 v11, s28, v3")
    k("s_barrier")
    k("s_cmp_eq_u32 s24, 0", f"s_cbranch_scc1 {Lw}")
    for gi in range(3): k(f"ds_write_b128 v10, {vr(OA+4*gi,4)} offset:{gi*1024}")
    k(f"s_branch {Lr}")
    k(f"{Lw}:")
    k("s_nop 6")
    for gi in range(3): k(f"ds_write_b128 v10, {vr(OB+4*gi,4)} offset:{gi*1024}")
    k(f"{Lr}:")
    k("s_add_u32 s25, s25, s24", "s_mul_i32 s20, s25, 40960", "s_add_u32 s20, s20, s18", f"s_add_u32 s20, s20, {OFB}")
    k("s_lshr_b32 s21, s16, 1", "s_mul_i32 s21, s21, 2560", "s_add_u32 s20, s20, s21", "s_and_b32 s21, s16, 1", "s_lshl_b32 s29, s21, 3", "s_add_u32 s29, s29, s20",
      "s_lshl_b32 s21, s21, 10", "s_add_u32 s20, s20, s21")
    k("s_mov_b32 s54, 0")
    k("s_waitcnt lgkmcnt(0)", "s_barrier")
    for gi in range(3): k(f"ds_read_b128 {vr(SA+4*gi,4)}, v11 offset:{gi*1024}")
    Lfin = k.label("fin"); Lslow = k.label("slow"); Lst = k.label("st"); La = k.label("a")
    k("s_cmp_eq_u32 s24, 0", f"s_cbranch_scc1 {La}")
    k("s_waitcnt lgkmcnt(0)")
    for i in range(12): k(f"v_add_f32 v{OA+i}, v{OB+i}, v{SA+i}")
    k(f"s_branch {Lfin}")
    k(f"{La}:")
    k("s_waitcnt lgkmcnt(0)")
    for i in range(12): k(f"v_add_f32 v{OA+i}, v{OA+i}, v{SA+i}")
    k(f"{Lfin}:")
    k(f"v_mov_b32 v{PA}, v{OA+8}", f"v_mov_b32 v{PA+1}, v{OA+8}", "s_nop 1", f"v_permlane32_swap_b32 v{PA}, v{PA+1}", "s_nop 0")
    k(f"v_rcp_f32 v{PA+2}, v{PA+1}", f"v_mov_b32 v{PA+3}, 0")
    for i in range(12): k(f"v_mul_f32 v{OA+i}, v{OA+i}, v{PA+2}")
    k("s_cmp_lg_u32 s54, 0", f"s_cbranch_scc1 {Lst}")
    for i in range(12): k(f"v_fma_f32 v{PA+3}, v{OA+i}, 0, v{PA+3}")
    k(f"v_mov_b32 v{PA+4}, {hex(f2u(2.0**100))}", f"v_mov_b32 v{PA+5}, {hex(f2u(2.0**-40))}")
    k(f"v_cmp_u_f32 vcc, v{PA+3}, v{PA+3}", f"v_cmp_nge_f32 s[42:43], v{PA+1}, v{PA+5}", "s_or_b64 vcc, vcc, s[42:43]")
    k(f"v_cmp_nge_f32 s[42:43], v{PA+4}, v{PA+1}", "s_or_b64 vcc, vcc, s[42:43]")
    k(f"s_cbranch_vccnz {Lslow}")
    k(f"{Lst}:")
    for i in range(6): k(f"v_cvt_pk_bf16_f32 v{OA+i}, v{OA+2*i}, v{OA+2*i+1}")
    k(f"buffer_store_dwordx4 {vr(OA,4)}, v3, s[4:7], s20 offen {SC1}")
    k("s_mov_b64 exec, s[32:33]", f"buffer_store_dwordx2 {vr(OA+4,2)}, v3, s[4:7], s29 offen offset:2048 {SC1}", "s_mov_b64 exec, -1")
    k.rstamp(6)
    k("s_lshl_b32 s53, s17, 5")
    signal(k, 8, 16, 2, False, "s53", 32)

    def slow(k):
        L1 = k.label("p1"); L2 = k.label("p2")
        k(f"{Lslow}:")
        k("s_mov_b32 s54, 1")
        Lm = k.label("mv")
        k("s_cmp_eq_u32 s24, 0", f"s_cbranch_scc1 {Lm}")
        for i in range(6): k(f"v_mov_b32 v{QA1+i}, v{QB1+i}")
        k(f"{Lm}:")
        k("s_mov_b64 exec, s[34:35]", f"v_mov_b32 v{QA2}, 0", "s_mov_b64 exec, -1")
        k(f"v_add_u32 v{AK2}, s28, v{GK2}", f"v_add_u32 v{AV}, s28, v{GV}", f"v_mov_b32 v{PB}, 0xff800000")
        def tile(withv):
            k("s_mov_b32 m0, s28", "s_nop 0")
            for i in range(3): k(f"buffer_load_dwordx4 v3, s[4:7], s21 offen offset:{i*1024} {SC1} lds")
            k("s_waitcnt vmcnt(0)")
            k(f"ds_read_b64 {vr(K2[0],2)}, v{AK2}", f"ds_read_b128 {vr(K1[0],4)}, v11")
            if withv:
                for q in range(4): k(f"ds_read_b64_tr_b16 {vr(VV[0]+2*q,2)}, v{AV} offset:{128*q}")
            k("s_waitcnt lgkmcnt(0)")
            qk(k, SA, 0, QA1, QA2, 0); qk(k, SA, 0, QA1, QA2, 1)
            k("s_nop 15")
        k("s_mov_b32 s21, s26", "s_mov_b32 s55, 64")
        k(f"{L1}:")
        tile(False)
        rowmax(k, SA, PA)
        k(f"v_max_f32 v{PB}, v{PB}, v{PA}")
        k("s_add_u32 s21, s21, 3072", "s_sub_u32 s55, s55, 1", "s_cmp_lg_u32 s55, 0", f"s_cbranch_scc1 {L1}")
        crossmax(k, PB, PA)
        for i in range(16): k(f"v_mov_b32 v{OA+i}, 0")
        k("s_mov_b32 s21, s26", "s_mov_b32 s55, 64")
        k(f"{L2}:")
        tile(True)
        for i in range(16): k(f"v_sub_f32 v{SA+i}, v{SA+i}, v{PB}")
        for o in softmax_ops(SA, PA): k(o)
        k("s_nop 1")
        pv(k, OA, 0, PA, 0); pv(k, OA, 0, PA, 1)
        k("s_add_u32 s21, s21, 3072", "s_sub_u32 s55, s55, 1", "s_cmp_lg_u32 s55, 0", f"s_cbranch_scc1 {L2}")
        k("s_nop 15")
        k(f"s_branch {Lfin}")
    phase_attn.slow = slow
```

```python
from fw import *
import os
E = lambda n, d: int(os.environ.get(n, d))

RING = 144
PHYS = [0, 3, 1, 4, 2, 5]
def slot(idx):
    v = idx % RING
    return PHYS[v // 24] * 24 + v % 24
SEG = dict(kv=0, wo=192, gu=294, dn=576, qkv=846, end=1008)
MISC = RING * 1024
CSQ_L = MISC; CSG_L = MISC + 512; CNT_L = MISC + 2048
SQC = math.sqrt((20 ** -0.5) * math.log2(math.e))
RES = 16; ACC = 40
NAGPR = 96
WR = 9
AR0 = 40
SC1 = "sc1"

def signal(k, nwaves, cnt_off, mb_phase, next_layer, base_sreg, nlanes):
    L = k.label("sig")
    k("s_waitcnt vmcnt(0)")
    k(f"v_mov_b32 v10, {CNT_L + cnt_off}", "v_mov_b32 v11, 1", "s_mov_b64 exec, 1", "ds_add_rtn_u32 v12, v10, v11", "s_mov_b64 exec, -1")
    k(f"s_lshl_b32 s50, {base_sreg}, 7", "s_add_u32 s50, s50, s18", f"s_add_u32 s50, s50, {MBX + mb_phase*32768 + (SLOT if next_layer else 0)}")
    k("v_lshlrev_b32 v10, 7, v1")
    k("s_waitcnt lgkmcnt(0)", "v_readfirstlane_b32 s51, v12", f"s_and_b32 s51, s51, {nwaves-1}", f"s_cmp_lg_u32 s51, {nwaves-1}", f"s_cbranch_scc1 {L}")
    k(f"s_mov_b32 exec_lo, {hex((1 << nlanes) - 1)}", "s_mov_b32 exec_hi, 0", f"buffer_atomic_add v11, v10, s[4:7], s50 offen {SC1}", "s_mov_b64 exec, -1")
    k(f"{L}:")

def poll(k, mb_phase, idx_sreg, expect):
    L = k.label("poll"); Lo = k.label("pollo")
    k(f"s_lshl_b32 s50, {idx_sreg}, 7", "s_add_u32 s50, s50, s18", f"s_add_u32 s50, s50, {MBX + mb_phase*32768}")
    k("s_mov_b32 s52, 0x100000", "s_mov_b64 exec, 1")
    k(f"{L}:")
    k(f"buffer_load_dword v9, off, s[4:7], s50 {SC1}", "s_sub_u32 s52, s52, 1", f"s_cbranch_scc1 {Lo}")
    k("s_waitcnt vmcnt(0)", "v_readfirstlane_b32 s51, v9", f"s_cmp_lt_u32 s51, {expect}", f"s_cbranch_scc1 {L}")
    k(f"{Lo}:")
    k("s_mov_b64 exec, -1")

def gemm_C(k, seg, MB, NB, NK, aregs, G, bars, npre, after_first=None):
    D = WR - 1
    base = SEG[seg]; NF = NK * NB; RA = len(aregs)
    bounds = list(range(G, NK, G)) + [NK]
    e0 = next(b for b in bounds if b * NB >= D)
    bars.append((base + e0 * NB, base))
    k("s_barrier")
    cov = [e0]
    vm = []
    def act(s):
        for mb in range(MB):
            k(f"buffer_load_dwordx4 {aregs[s % RA](mb)}, v6, s[4:7], s20 offen offset:{(s&1)*2048+mb*256} {SC1}")
            vm.append(s)
        if s & 1: k("s_add_u32 s20, s20, 4096")
    def rd(f):
        s = f // NB
        if s >= cov[0]:
            e = next(b for b in bounds if b > s)
            bars.append((base + e * NB, base + max(0, f - D)))
            k("s_barrier"); cov[0] = e
        p = slot(base + f)
        k(f"ds_read_b128 {ar((f % WR)*4,4)}, {('v3','v4','v5')[p // 64]} offset:{(p % 64)*1024}")
    nact = min(npre, RA, NK)
    for s in range(nact):
        act(s)
        if s == 1 and after_first:
            for _ in range(after_first()): vm.append(-1)
    for f in range(D): rd(f)
    for f in range(NF):
        s, b = divmod(f, NB)
        w = f"lgkmcnt({min(D - 1, NF - 1 - f)})"
        if b == 0:
            last = max(i for i, t in enumerate(vm) if t == s)
            w = f"vmcnt({len(vm) - 1 - last}) " + w
        k("s_waitcnt " + w)
        for mb in range(MB):
            d = vr(ACC + (mb * NB + b) * 4, 4)
            k(f"v_mfma_f32_16x16x32_bf16 {d}, {ar((f % WR)*4,4)}, {aregs[s % RA](mb)}, {d if s else 0}")
            if mb == 0 and f + D < NF: rd(f + D)
        if nact < NK and b == min(1, NB - 1) and nact - RA < s and nact <= s + npre:
            act(nact); nact += 1
    bars.append((base + NF, base + NF // 3 * 3 + (3 if NF % 3 else 0)))
    k("s_barrier")

def gen_L(k, bars, issued, first_cap=None, cap=None, stop=SEG["end"], hooks=None):
    segs = [("wo", WO, "s15", 100), ("gu", WGU, "s13", 280), ("dn", WD, "s15", 270), ("qkv", WQ, "s13", 160)]
    def setsrc(idx):
        for n, wb, ct, np_ in segs:
            if SEG[n] <= idx < SEG[n] + np_:
                k(f"s_mul_i32 s30, {ct}, {np_*1024}", f"s_add_u32 s30, s30, {wb + (idx - SEG[n])*1024}", "s_add_u32 s30, s30, s31"); return
        assert 0
    st = dict(i=issued, src=False)
    def issue(limit, cap):
        n = 0
        while st["i"] + 3 <= min(limit, stop) and (cap is None or n < cap):
            if not st["src"] or st["i"] in SEG.values(): setsrc(st["i"]); st["src"] = True
            k(f"s_add_u32 m0, s31, {slot(st['i'])*1024}", "s_nop 0", "buffer_load_dwordx4 v3, s[4:7], s30 offen lds", "s_add_u32 s30, s30, 3072")
            st["i"] += 3; n += 1
    lim = issued + (RING if first_cap else 0)
    if first_cap: issue(stop, first_cap)
    for j, (need, free) in enumerate(bars):
        if hooks and j in hooks: hooks[j](st)
        if st["i"] < need: issue(min(need + 2, lim), None)
        assert st["i"] >= need, (j, need, st)
        n = (st["i"] - need) // 3
        k(f"s_waitcnt vmcnt({min(n, 63)})", "s_barrier")
        lim = free + RING
        issue(lim, cap)
    return st["i"]

def ln_stats(k, S0):
    for mb in range(2): k(f"v_add_f32 v{26+mb}, v{S0+4*mb}, v{S0+4*mb+2}", f"v_add_f32 v{28+mb}, v{S0+4*mb+1}, v{S0+4*mb+3}")
    for sw in ("v_permlane32_swap_b32", "v_permlane16_swap_b32"):
        for i in range(4): k(f"v_mov_b32 v{S0+i}, v{26+i}")
        k("s_nop 0")
        for i in range(4): k(f"{sw} v{S0+i}, v{26+i}")
        k("s_nop 0")
        for i in range(4): k(f"v_add_f32 v{26+i}, v{26+i}, v{S0+i}")
    for i in range(4): k(f"v_mul_f32 v{26+i}, {hex(f2u(1/640))}, v{26+i}")
    for mb in range(2):
        k(f"v_fma_f32 v{28+mb}, -v{26+mb}, v{26+mb}, v{28+mb}", f"v_max_f32 v{28+mb}, 0, v{28+mb}", f"v_add_f32 v{28+mb}, {hex(f2u(1e-5))}, v{28+mb}")

def stats_loads(k, S0, stbase):
    k("s_lshl_b32 s21, s24, 8", "s_add_u32 s21, s21, s18", f"s_add_u32 s21, s21, {stbase}", "s_add_u32 s25, s21, 16384")
    k("v_lshlrev_b32 v10, 15, v8", "v_lshl_add_u32 v10, v7, 3, v10")
    for mb in range(2):
        for c in range(2): k(f"buffer_load_dwordx2 {vr(S0+4*mb+2*c,2)}, v10, s[4:7], s{(21,25)[c]} offen offset:{mb*128} {SC1}")
    return 4

AG2 = [(lambda i: (lambda mb: ar(AR0 + 8*i + 4*mb, 4)))(i) for i in range((NAGPR - AR0) // 8)]
AG1 = [(lambda i: (lambda mb: ar(AR0 + 4*i, 4)))(i) for i in range((NAGPR - AR0) // 4)] + [(lambda i: (lambda mb: vr(64 + 4*i, 4)))(i) for i in range(24)]

def phase_qkv(k, bars):
    k("s_lshl_b32 s24, s12, 2", "s_add_u32 s24, s24, s23")
    k("s_mul_i32 s20, s24, 40960", "s_add_u32 s20, s20, s18", f"s_add_u32 s20, s20, {XA}")
    S0 = 136; CS = 104
    def aft():
        n = stats_loads(k, S0, STA)
        k(f"v_lshlrev_b32 v11, 4, v8")
        for b in range(8): k(f"ds_read_b128 {vr(CS+4*b,4)}, v11 offset:{b*64}" if False else f"ds_read_b128 {vr(CS+4*b,4)}, v13 offset:{b*64}")
        k("s_waitcnt lgkmcnt(0)")
        return n
    k(f"v_lshlrev_b32 v13, 4, v8", f"v_add_u32 v13, {CSQ_L}, v13")
    k("s_lshl_b32 s26, s13, 7", "s_add_u32 s26, s26, s24")
    k("s_lshl_b32 s28, s26, 10", f"s_add_u32 s28, s28, {QB}", "s_mul_i32 s26, s26, 3072", f"s_add_u32 s29, s26, {KVB-1024}")
    k("v_mov_b32 v14, s29", "v_mov_b32 v15, s28", "v_cndmask_b32 v14, v14, v15, s[32:33]", "v_add_u32 v14, v14, v6")
    k(f"v_mov_b32 v15, {64*3072}", f"v_mov_b32 v10, {64*1024}", "v_cndmask_b32 v15, v15, v10, s[32:33]", "v_add_u32 v15, v15, v14")
    k("s_add_u32 s26, s26, s18", f"s_add_u32 s26, s26, {KVB+1024}", f"s_add_u32 s27, s26, {64*3072}")
    gemm_C(k, "qkv", 2, 8, 20, AG2, E("QG", 2), bars, E("QPRE", 6), aft)
    k.rstamp(1)
    ln_stats(k, S0)
    for mb in range(2):
        a = 30 + 4 * mb
        k(f"v_rsq_f32 v{a+2}, v{28+mb}", "s_nop 0", f"v_mul_f32 v{a+3}, v{26+mb}, v{a+2}", f"v_sub_f32 v{a+3}, 0, v{a+3}")
        k(f"v_mul_f32 v{a}, {hex(f2u(SQC))}, v{a+2}", f"v_mul_f32 v{a+1}, {hex(f2u(SQC))}, v{a+3}")
        k(f"v_cndmask_b32 v{a+2}, v{a+2}, v{a}, s[40:41]", f"v_cndmask_b32 v{a+3}, v{a+3}, v{a+1}, s[40:41]")
    k("v_mov_b32 v10, 0x3f80")
    for p in range(4):
        for mb in range(2):
            P = vr(30 + 4 * mb + 2 * (p & 1), 2)
            a0 = ACC + (mb * 8 + 2 * p) * 4
            for h in range(4): k(f"v_pk_mul_f32 {vr(a0+2*h,2)}, {vr(a0+2*h,2)}, {P} op_sel:[0,0] op_sel_hi:[1,0]")
            for h in range(4): k(f"v_pk_fma_f32 {vr(a0+2*h,2)}, {vr(CS+8*p+2*h,2)}, {P}, {vr(a0+2*h,2)} op_sel:[0,1,0] op_sel_hi:[1,1,1]")
            for h in range(4): k(f"v_cvt_pk_bf16_f32 v{a0+h}, v{a0+2*h}, v{a0+2*h+1}")
            if p & 1:
                k(f"v_cndmask_b32 v{a0+2}, v{a0+2}, v10, s[38:39]", f"v_cndmask_b32 v{a0+3}, v{a0+3}, 0, s[38:39]")
                k(f"buffer_store_dwordx4 {vr(a0,4)}, v6, s[4:7], s{26+(p>>1)} offen offset:{mb*256} {SC1}")
            else:
                k(f"buffer_store_dwordx4 {vr(a0,4)}, v{14+(p>>1)}, s[4:7], s18 offen offset:{mb*256} {SC1}")
    k.rstamp(2)
    k("s_lshl_b32 s53, s13, 4")
    signal(k, 4, 0, 1, False, "s53", 16)

def phase_gu(k, bars):
    k("s_lshl_b32 s24, s12, 2", "s_add_u32 s24, s24, s23")
    k("s_mul_i32 s20, s24, 40960", "s_add_u32 s20, s20, s18", f"s_add_u32 s20, s20, {XB}")
    S0 = 152
    k(f"v_lshlrev_b32 v13, 4, v8", f"v_add_u32 v13, {CSG_L}, v13")
    k("v_lshrrev_b32 v14, 1, v8", "v_lshlrev_b32 v14, 9, v14", "v_and_b32 v15, 1, v8", "v_lshl_add_u32 v14, v15, 8, v14", "v_lshl_add_u32 v14, v7, 4, v14")
    k(f"s_mul_i32 s26, s24, {224*512}", f"s_mul_i32 s27, s13, {14*512}", "s_add_u32 s26, s26, s27", "s_add_u32 s26, s26, s18", f"s_add_u32 s26, s26, {HFB}", "s_add_u32 s27, s26, 4096")
    gemm_C(k, "gu", 2, 14, 20, AG2, E("GG", 1), bars, E("GPRE", 4), lambda: stats_loads(k, S0, STB))
    k.rstamp(10)
    CB = [32, 152]
    def csrd(bi): k(f"ds_read_b128 {vr(CB[bi&1],4)}, v13 offset:{bi*64}", f"ds_read_b128 {vr(CB[bi&1]+4,4)}, v13 offset:{(7+bi)*64}")
    csrd(0)
    ln_stats(k, S0)
    csrd(1)
    k("v_rcp_f32 v30, v28", "v_rcp_f32 v31, v29", "v_sub_f32 v28, 0, v27", "v_sub_f32 v26, 0, v26", "v_mov_b32 v27, v30", "v_mov_b32 v29, v31")
    for bi in range(7):
        k(f"s_waitcnt lgkmcnt({2 if bi < 6 else 0})")
        c = CB[bi & 1]
        for mb in range(2):
            ga = ACC + (mb * 14 + bi) * 4; ua = ACC + (mb * 14 + 7 + bi) * 4; P = vr(26 + 2 * mb, 2)
            for h in range(2):
                k(f"v_pk_fma_f32 {vr(ga+2*h,2)}, {vr(c+2*h,2)}, {P}, {vr(ga+2*h,2)} op_sel:[0,0,0] op_sel_hi:[1,0,1]")
                k(f"v_pk_fma_f32 {vr(ua+2*h,2)}, {vr(c+4+2*h,2)}, {P}, {vr(ua+2*h,2)} op_sel:[0,0,0] op_sel_hi:[1,0,1]")
            if mb == 1 and bi + 2 < 7: csrd(bi + 2)
            for i in range(4): k(f"v_max_f32 v{ga+i}, 0, v{ga+i}")
            for h in range(2): k(f"v_pk_mul_f32 {vr(ua+2*h,2)}, {vr(ua+2*h,2)}, {P} op_sel:[0,1] op_sel_hi:[1,1]")
            for h in range(2): k(f"v_pk_mul_f32 {vr(ga+2*h,2)}, {vr(ga+2*h,2)}, {vr(ua+2*h,2)}")
            if bi < 6: d = ACC + (mb * 14 + (bi & ~1)) * 4 + 2 * (bi & 1)
            else: d = ACC + 6 * 4 + 2 * mb
            k(f"v_cvt_pk_bf16_f32 v{d}, v{ga}, v{ga+1}", f"v_cvt_pk_bf16_f32 v{d+1}, v{ga+2}, v{ga+3}")
            if bi < 6 and bi & 1:
                p = bi >> 1
                k(f"buffer_store_dwordx4 {vr(d-2,4)}, v6, s[4:7], s{26+(p>>1)} offen offset:{(p&1)*2048+mb*256} {SC1}")
    q = ACC + 24
    k("s_nop 1", f"v_permlane16_swap_b32 v{q}, v{q+2}", f"v_permlane16_swap_b32 v{q+1}, v{q+3}")
    k(f"buffer_store_dwordx4 {vr(q,4)}, v14, s[4:7], s27 offen offset:2048 {SC1}")
    k.rstamp(11)
    k("s_lshl_b32 s53, s12, 4")
    signal(k, 4, 4, 4, False, "s53", 16)

def proj_addr(k):
    k("s_lshl_b32 s24, s14, 1", "s_lshr_b32 s25, s23, 1", "s_add_u32 s24, s24, s25", "s_and_b32 s25, s23, 1", "s_lshl_b32 s25, s25, 8")
    k("v_lshrrev_b32 v14, 1, v8", "v_lshlrev_b32 v14, 9, v14", "v_lshl_add_u32 v14, v7, 4, v14")

def phase_proj(k, bars, kind, Lfinal=None):
    wo = kind == "wo"
    NK = 20 if wo else 54
    proj_addr(k)
    k(f"s_mul_i32 s20, s24, {40960 if wo else 224*512}", "s_add_u32 s20, s20, s25", "s_add_u32 s20, s20, s18", f"s_add_u32 s20, s20, {OFB if wo else HFB}")
    xo = XB if wo else XA + SLOT; so = STB if wo else STA + SLOT
    k("s_mul_i32 s26, s24, 40960", "s_mul_i32 s27, s15, 5120", "s_add_u32 s26, s26, s27", "s_add_u32 s26, s26, s25", "s_add_u32 s26, s26, s18", f"s_add_u32 s26, s26, {xo}", "s_add_u32 s27, s26, 4096")
    k("s_lshl_b32 s28, s15, 14", "s_lshl_b32 s29, s24, 8", "s_add_u32 s28, s28, s29", "s_lshr_b32 s29, s25, 1", "s_add_u32 s28, s28, s29", "s_add_u32 s28, s28, s18", f"s_add_u32 s28, s28, {so}")
    gemm_C(k, kind, 1, 5, NK, AG1, E("PG", 4), bars, E("PPRE", 12))
    k.rstamp(7 if wo else 13)
    k("s_nop 4")
    for b in range(5):
        a = ACC + 4 * b; r = RES + 2 * b
        k(f"v_lshlrev_b32 v26, 16, v{r}", f"v_and_b32 v27, 0xffff0000, v{r}", f"v_lshlrev_b32 v28, 16, v{r+1}", f"v_and_b32 v29, 0xffff0000, v{r+1}")
        k(f"v_pk_add_f32 {vr(a,2)}, {vr(a,2)}, v[26:27]", f"v_pk_add_f32 {vr(a+2,2)}, {vr(a+2,2)}, v[28:29]")
        k(f"v_cvt_pk_bf16_f32 v{r}, v{a}, v{a+1}", f"v_cvt_pk_bf16_f32 v{r+1}, v{a+2}, v{a+3}")
    k(f"v_mov_b32 v30, v{RES+8}", f"v_mov_b32 v31, v{RES+9}", f"v_mov_b32 v32, v{RES+8}", f"v_mov_b32 v33, v{RES+9}", "s_nop 1",
      "v_permlane16_swap_b32 v30, v32", "v_permlane16_swap_b32 v31, v33")
    if Lfinal: k("s_cmp_lg_u32 s19, 0", f"s_cbranch_scc1 {Lfinal}")
    k(f"buffer_store_dwordx4 {vr(RES,4)}, v6, s[4:7], s26 offen {SC1}", f"buffer_store_dwordx4 {vr(RES+4,4)}, v6, s[4:7], s26 offen offset:2048 {SC1}")
    k("s_mov_b64 exec, s[36:37]", f"buffer_store_dwordx4 v[30:33], v14, s[4:7], s27 offen {SC1}", "s_mov_b64 exec, -1")
    k("s_mov_b32 s50, 0x3f803f80", "v_mov_b32 v26, 0", "v_mov_b32 v27, 0")
    for i in range(10): k(f"v_dot2c_f32_bf16 v26, s50, v{RES+i}", f"v_dot2c_f32_bf16 v27, v{RES+i}, v{RES+i}")
    k("v_lshlrev_b32 v10, 3, v7", "s_nop 1")
    for sw in ("v_permlane32_swap_b32", "v_permlane16_swap_b32"):
        k("v_mov_b32 v28, v26", "v_mov_b32 v29, v27", "s_nop 1", f"{sw} v28, v26", f"{sw} v29, v27", "s_nop 0", "v_add_f32 v26, v26, v28", "v_add_f32 v27, v27, v29")
    k("s_mov_b64 exec, 0xffff", f"buffer_store_dwordx2 v[26:27], v10, s[4:7], s28 offen {SC1}", "s_mov_b64 exec, -1")
    k.rstamp(8 if wo else 14)
    k("s_lshr_b32 s53, s14, 1", "s_lshl_b32 s53, s53, 4")
    signal(k, 4, 8 if wo else 12, 3 if wo else 0, not wo, "s53", 16)

from k_attn import phase_attn

def gen_mega():
    k = K("mega_kernel", 256, 512, 163840, nvgpr=160, nagpr=NAGPR)
    Lend = k.label("end"); Latt = k.label("att")
    k("s_cmp_ge_u32 s2, 256", f"s_cbranch_scc1 {Lend}")
    k.rstamp(15)
    k("s_load_dwordx2 s[48:49], s[0:1], 72", "s_load_dwordx2 s[46:47], s[0:1], 56")
    k("v_lshrrev_b32 v2, 6, v0", "v_and_b32 v1, 63, v0", "v_lshlrev_b32 v3, 4, v1", "v_readfirstlane_b32 s22, v2")
    k("v_add_u32 v4, 0x10000, v3", "v_add_u32 v5, 0x20000, v3", "v_and_b32 v7, 15, v1", "v_lshrrev_b32 v8, 4, v1", "v_lshlrev_b32 v6, 9, v8", "v_lshl_add_u32 v6, v7, 4, v6")
    k("s_and_b32 s23, s22, 3", "s_and_b32 s50, s2, 7", "s_lshr_b32 s51, s2, 3", "s_and_b32 s17, s51, 7", "s_lshr_b32 s51, s51, 3")
    k("s_lshr_b32 s12, s50, 2", "s_lshl_b32 s12, s12, 3", "s_add_u32 s12, s12, s17", "s_and_b32 s13, s50, 3", "s_lshl_b32 s13, s13, 2", "s_add_u32 s13, s13, s51")
    k("s_lshr_b32 s14, s50, 1", "s_lshl_b32 s14, s14, 3", "s_add_u32 s14, s14, s17", "s_and_b32 s15, s50, 1", "s_lshl_b32 s15, s15, 2", "s_add_u32 s15, s15, s51")
    k("s_lshl_b32 s16, s50, 2", "s_add_u32 s16, s16, s51")
    k("s_mov_b32 s18, 0", "s_mov_b32 s19, 0", "s_lshl_b32 s31, s23, 10")
    k("s_mov_b32 s32, -1", "s_mov_b32 s33, 0", "s_mov_b32 s34, 0", "s_mov_b32 s35, -1", "s_mov_b32 s36, 0xffff", "s_mov_b32 s37, 0xffff",
      "s_mov_b32 s38, 0", "s_mov_b32 s39, 0xffff", "s_mov_b32 s40, 0", "s_mov_b32 s41, 0xffff0000")
    k("s_waitcnt lgkmcnt(0)")
    ws_srd(k)
    k("s_mov_b32 s8, s46", "s_and_b32 s9, s47, 0xffff", f"s_mov_b32 s10, {2048*1280}", "s_mov_b32 s11, 0x00020000")
    LC, LL, LP = k.label("C"), k.label("L"), k.label("P")
    LCq, LL0, LP0, LPq = k.label("Cq"), k.label("L0"), k.label("P0"), k.label("Pq")
    k("s_cmp_eq_u32 s22, 7", f"s_cbranch_scc1 {LP0}", "s_cmp_ge_u32 s22, 4", f"s_cbranch_scc1 {LL0}")
    proj_addr(k)
    k("s_mul_i32 s26, s24, 40960", "s_mul_i32 s27, s15, 5120", "s_add_u32 s26, s26, s27", "s_add_u32 s26, s26, s25", f"s_add_u32 s26, s26, {XA}", "s_add_u32 s27, s26, 4096")
    k("v_and_b32 v10, 1, v8", "v_lshl_add_u32 v10, v10, 3, v14")
    k(f"buffer_load_dwordx4 {vr(RES,4)}, v6, s[4:7], s26 offen", f"buffer_load_dwordx4 {vr(RES+4,4)}, v6, s[4:7], s26 offen offset:2048",
      f"buffer_load_dwordx2 {vr(RES+8,2)}, v10, s[4:7], s27 offen")
    k("s_setprio 2")
    k(f"s_branch {LCq}")
    body = K("x", 0, 0, 0, 0);
    k(f"{Latt}:")
    phase_attn(k, poll, signal, slot, SEG, SC1)
    k("s_cmp_eq_u32 s22, 7", f"s_cbranch_scc1 {LP}", "s_cmp_ge_u32 s22, 4", f"s_cbranch_scc1 {LL}")
    bars = {n: [] for n in ("wo", "gu", "dn", "qkv")}
    Lfinal = k.label("final")
    k(f"{LC}:")
    k("s_setprio 2")
    phase_proj(k, bars["wo"], "wo"); k.rstamp(9)
    phase_gu(k, bars["gu"]); k.rstamp(12)
    phase_proj(k, bars["dn"], "dn", Lfinal)
    k.rflush()
    k(f"s_add_u32 s18, s18, {SLOT}", "s_add_u32 s19, s19, 1")
    k(f"{LCq}:")
    k.rstamp(0)
    phase_qkv(k, bars["qkv"]); k.rstamp(3)
    k(f"s_branch {Latt}")
    k(f"{Lfinal}:")
    k("v_mul_u32_u24 v10, 1280, v7", "v_lshl_add_u32 v11, v8, 4, v10", "v_lshrrev_b32 v12, 1, v8", "v_lshl_add_u32 v12, v12, 4, v10")
    k("s_lshl_b32 s26, s24, 5", "s_lshr_b32 s27, s25, 4", "s_add_u32 s26, s26, s27", "s_mul_i32 s26, s26, 1280", "s_mul_i32 s27, s15, 160", "s_add_u32 s26, s26, s27")
    k(f"buffer_store_dwordx4 {vr(RES,4)}, v11, s[8:11], s26 offen", f"buffer_store_dwordx4 {vr(RES+4,4)}, v11, s[8:11], s26 offen offset:64")
    k("s_mov_b64 exec, s[36:37]", "buffer_store_dwordx4 v[30:33], v12, s[8:11], s26 offen offset:128", "s_mov_b64 exec, -1")
    if DIAG: k("s_waitcnt vmcnt(0)")
    k.rstamp(14); k.rflush()
    k("s_endpgm")
    k(f"{LL}:")
    k("s_setprio 0")
    allb = bars["wo"] + bars["gu"] + bars["dn"] + bars["qkv"]
    jq = len(allb) - len(bars["qkv"])
    def lay(st):
        k("s_cmp_lg_u32 s19, 0", f"s_cbranch_scc1 {Lend}", f"s_add_u32 s18, s18, {SLOT}", "s_add_u32 s19, s19, 1")
    gen_L(k, allb, 288, hooks={jq: lay})
    k(f"s_branch {Latt}")
    k(f"{LL0}:")
    gen_L(k, bars["qkv"], SEG["qkv"], first_cap=E("L0PRE", 12), cap=E("L0CAP", 8))
    k(f"s_branch {Latt}")
    def nbar(n):
        for _ in range(n): k("s_barrier")
    k(f"{LP}:")
    k("s_setprio 0")
    k("s_lshl_b32 s53, s14, 3", "s_add_u32 s53, s53, s15"); poll(k, 2, "s53", 32); nbar(len(bars["wo"]))
    k("s_lshl_b32 s53, s12, 4", "s_add_u32 s53, s53, s13"); poll(k, 3, "s53", 16); nbar(len(bars["gu"]))
    k("s_lshl_b32 s53, s14, 3", "s_add_u32 s53, s53, s15"); poll(k, 4, "s53", 16); nbar(len(bars["dn"]))
    lay(None)
    k("s_lshl_b32 s53, s12, 4", "s_add_u32 s53, s53, s13"); poll(k, 0, "s53", 16)
    k(f"{LPq}:")
    nbar(len(bars["qkv"]))
    k(f"s_branch {Latt}")
    k(f"{LP0}:")
    k("s_lshl_b32 s50, s13, 9", f"s_add_u32 s50, s50, {CSQ}", f"s_add_u32 s51, s50, {16*512}")
    k("s_mul_i32 s52, s13, 896", f"s_add_u32 s52, s52, {CSG}", f"s_add_u32 s53, s52, {16*896}")
    for i, sreg in enumerate((50, 51, 52, 53)): k(f"buffer_load_dwordx4 {vr(40+4*i,4)}, v3, s[4:7], s{sreg} offen")
    k(f"v_add_u32 v10, {MISC}, v3", "v_mov_b32 v56, 0", "v_mov_b32 v57, 0", "v_mov_b32 v58, 0", "v_mov_b32 v59, 0", "ds_write_b128 v10, v[56:59] offset:2048")
    k("s_waitcnt vmcnt(0)")
    for i in range(4): k(f"v_add_f32 v{40+i}, v{40+i}, v{44+i}", f"v_add_f32 v{48+i}, v{48+i}, v{52+i}")
    k("s_mov_b64 exec, s[32:33]", "ds_write_b128 v10, v[40:43]", "s_mov_b64 exec, -1", "ds_write_b128 v10, v[48:51] offset:512", "s_waitcnt lgkmcnt(0)")
    k(f"s_branch {LPq}")
    k(f"{Lend}:")
    k("s_waitcnt vmcnt(0)")
    k("s_endpgm")
    phase_attn.slow(k)
    return k
```

```python
from fw import *

def gen_prep():
    NG = 240
    k = K("prep_kernel", NG, 640, 81920, nvgpr=96)
    Lend = k.label("end")
    k(f"s_cmp_ge_u32 s2, {NG}", f"s_cbranch_scc1 {Lend}x")
    k.stamp(True); k.stamp()
    k("s_load_dwordx16 s[32:47], s[0:1], 0", "s_load_dwordx2 s[48:49], s[0:1], 72")
    k("v_lshrrev_b32 v2, 6, v0", "v_and_b32 v1, 63, v0", "s_nop 0", "v_readfirstlane_b32 s22, v2")
    k("v_bfe_u32 v4, v1, 2, 2", "v_and_b32 v5, 3, v1", "v_lshrrev_b32 v6, 4, v1", "v_lshlrev_b32 v12, 4, v1")
    k("v_lshl_add_u32 v7, v6, 3, v4")
    k("s_lshl_b32 s26, s22, 13", "s_mov_b32 s27, 0x3f803f80")
    k("s_waitcnt lgkmcnt(0)")
    ws_srd(k)
    k("s_mov_b32 s11, 0x00020000")
    labs = {n: k.label(n) for n in ("gate", "up", "gu", "wo", "wd", "x", "zero")}
    for lim, n in ((224, "zero"), (160, "x"), (112, "wd"), (96, "wo"), (64, "up"), (32, "gate")):
        k(f"s_cmp_ge_u32 s2, {lim}", f"s_cbranch_scc1 {labs[n]}")
    F = 32
    def src(lo, nbytes):
        k(f"s_mov_b32 s8, s{lo}", f"s_and_b32 s9, s{lo+1}, 0xffff", f"s_mov_b32 s10, {nbytes}")
    def wpath(kind):
        CH, RPI, NI, pitch, NB = dict(qkv=(15, 4, 8, 3840, 8), gu=(14, 4, 8, 3456, 7), wo=(10, 6, 6, 1280, 5), wd=(10, 6, 6, 1280, 5))[kind]
        LP = CH * 16
        magic = -(-65536 // CH)
        k(f"v_mul_u32_u24 v8, {magic}, v1", "v_lshrrev_b32 v8, 16, v8", f"v_mul_u32_u24 v9, {CH}, v8", "v_sub_u32 v9, v1, v9")
        if kind == "qkv":
            k("v_mul_u32_u24 v10, 13108, v9", "v_lshrrev_b32 v10, 16, v10", "v_mul_u32_u24 v10, 1200, v10", "v_lshl_add_u32 v9, v9, 4, v10")
            k("s_mul_i32 s24, s13, 80")
        else:
            k("v_lshlrev_b32 v9, 4, v9", f"s_mul_i32 s24, s13, {LP}")
        k(f"v_cmp_gt_u32 vcc, {RPI}, v8")
        k("s_lshl_b32 s25, s14, 5")
        if kind != "wo":
            k(f"v_mul_u32_u24 v3, {pitch}, v8", "v_add_u32 v3, v3, v9", f"s_mul_i32 s25, s25, {pitch}", "s_add_u32 s24, s24, s25")
            k("s_mov_b64 exec, vcc")
            for i in range(NI):
                k(f"s_add_u32 m0, s26, {i*RPI*LP}", "s_nop 0", "buffer_load_dwordx4 v3, s[8:11], s24 offen lds", f"s_add_u32 s24, s24, {RPI*pitch}")
        else:
            k("s_mov_b64 s[28:29], vcc", "v_add_u32 v8, s25, v8")
            for i in range(NI):
                k(f"v_add_u32 v10, {i*RPI}, v8", "v_mul_u32_u24 v11, 1639, v10", "v_lshrrev_b32 v11, 16, v11", "v_mul_u32_u24 v13, 40, v11", "v_sub_u32 v13, v10, v13",
                  "v_mov_b32 v14, 0", "v_cmp_le_u32 vcc, 16, v13", "s_nop 1", "v_cndmask_b32 v14, v14, 4, vcc",
                  "v_cmp_le_u32 vcc, 32, v13", "s_nop 1", "v_cndmask_b32 v14, v14, -16, vcc",
                  "v_cmp_le_u32 vcc, 36, v13", "s_nop 1", "v_cndmask_b32 v14, v14, 0, vcc",
                  "v_add_u32 v10, v10, v14", f"v_mul_u32_u24 v{16+i}, {pitch}, v10", f"v_add_u32 v{16+i}, v{16+i}, v9")
            k("s_mov_b64 exec, s[28:29]")
            for i in range(NI):
                k(f"s_add_u32 m0, s26, {i*RPI*LP}", "s_nop 0", f"buffer_load_dwordx4 v{16+i}, s[8:11], s24 offen lds")
        k("s_mov_b64 exec, -1")
        k(f"v_mul_u32_u24 v13, {LP}, v7", "v_add_u32 v13, s26, v13")
        if kind == "qkv":
            k("v_and_b32 v14, 1, v5", "v_lshlrev_b32 v14, 4, v14", "v_lshrrev_b32 v15, 1, v5", "v_mul_u32_u24 v15, 80, v15", "v_add3_u32 v14, v14, v15, v13")
            k("v_lshlrev_b32 v15, 4, v5", "v_add_u32 v15, 160, v15", "v_add_u32 v16, 8, v15", "v_cmp_eq_u32 vcc, 3, v5", "v_mov_b32 v17, 112", "s_nop 0",
              "v_cndmask_b32 v15, v15, 32, vcc", "v_cndmask_b32 v16, v16, v17, vcc", "v_cmp_eq_u32 vcc, 2, v5", "v_mov_b32 v17, 192", "s_nop 0", "v_cndmask_b32 v16, v16, v17, vcc",
              "v_add_u32 v15, v15, v13", "v_add_u32 v16, v16, v13")
            def addr(b):
                p, e = divmod(b, 2); hb, odd = divmod(p, 2)
                return ("v14", 40 * hb + 8 * e) if not odd else (("v15", "v16")[e], 40 * hb)
        else:
            k("v_lshl_add_u32 v14, v5, 4, v13", "v_lshl_add_u32 v15, v5, 3, v13")
            def addr(b):
                if b == NB - 1: return ("v15", 32 * b)
                p, e = divmod(b, 2)
                return ("v14", 64 * p + 8 * e)
        base, NK, FPT = dict(qkv=(WQ, 20, 8), gu=(WGU, 20, 14), wo=(WO, 20, 5), wd=(WD, 54, 5))[kind]
        k(f"s_mul_i32 s28, s13, {NK}", "s_add_u32 s28, s28, s14", f"s_mul_i32 s28, s28, {FPT}")
        if kind == "gu": k("s_add_u32 s28, s28, s21")
        k("s_lshl_b32 s28, s28, 10", f"s_add_u32 s28, s28, {base}", "s_add_u32 s29, s28, 4096")
        k("s_waitcnt vmcnt(0)")
        for b in range(NB):
            a, o = addr(b)
            for h in range(2): k(f"ds_read_b64_tr_b16 {vr(F+4*b+2*h,2)}, {a} offset:{o+4*h*LP}")
            if b == 6 and NB == 8: k("s_waitcnt lgkmcnt(4)")
        k("s_waitcnt lgkmcnt(0)")
        for b in range(NB):
            k(f"buffer_store_dwordx4 {vr(F+4*b,4)}, v12, s[4:7], s{28+(b>>2)} offen offset:{(b&3)*1024}")
        if kind in ("wo", "wd"):
            k(f"s_branch {Lend}"); return
        for b in range(NB): k(f"v_mov_b32 v{20+b}, 0")
        for r in range(4):
            for b in range(NB): k(f"v_dot2c_f32_bf16 v{20+b}, s27, v{F+4*b+r}")
        k("v_lshlrev_b32 v13, 2, v1", "v_add_u32 v13, s26, v13", "s_nop 2")
        for b in range(NB): k(f"ds_write_b32 v13, v{20+b} offset:{b*256}")
        k("s_waitcnt lgkmcnt(0)", "s_barrier")
        k("s_cmp_ge_u32 s22, 2", f"s_cbranch_scc1 {Lend}")
        k("v_lshrrev_b32 v13, 4, v0", "v_lshlrev_b32 v13, 8, v13", "v_and_b32 v14, 15, v0", "v_lshl_add_u32 v13, v14, 2, v13", "v_add_u32 v14, 0x8000, v13")
        for w in range(10):
            for q in range(4):
                k(f"ds_read_b32 v{F+w*4+q}, {'v13' if w < 5 else 'v14'} offset:{(w if w < 5 else w-4)*8192+q*64}")
                if (w * 4 + q) % 12 == 11: k("s_waitcnt lgkmcnt(2)")
        CW = 128 if kind == "qkv" else 224
        k(f"s_lshl_b32 s28, s15, 4", "s_add_u32 s28, s28, s13", f"s_mul_i32 s28, s28, {CW*4}", f"s_add_u32 s28, s28, {CSQ if kind == 'qkv' else CSG}")
        if kind == "gu": k("s_lshl_b32 s29, s21, 6", "s_add_u32 s28, s28, s29")
        k("v_lshlrev_b32 v2, 2, v0", f"v_cmp_gt_u32 vcc, {NB*16}, v0" if NB * 16 <= 64 else f"v_cmp_gt_u32 vcc, {NB*16}, v0")
        k("s_waitcnt lgkmcnt(0)")
        n = 40
        while n > 1:
            h = n // 2
            for i in range(h): k(f"v_add_f32 v{F+i}, v{F+i}, v{F+n-h+i}")
            n -= h
        k("s_mov_b64 exec, vcc", f"buffer_store_dword v{F}, v2, s[4:7], s28 offen")
        k(f"s_branch {Lend}")
    def halves(first):
        k(f"s_sub_u32 s12, s2, {first}", "s_lshr_b32 s13, s12, 1", "s_and_b32 s15, s12, 1", "s_mul_i32 s14, s15, 10", "s_add_u32 s14, s14, s22")
    src(34, 640 * 3840); halves(0); wpath("qkv")
    k(f"{labs['gate']}:"); src(40, 640 * 3456); halves(32); k("s_mov_b32 s21, 0", f"s_branch {labs['gu']}")
    k(f"{labs['up']}:"); src(42, 640 * 3456); halves(64); k("s_mov_b32 s21, 7")
    k(f"{labs['gu']}:"); wpath("gu")
    k(f"{labs['wo']}:"); src(36, 640 * 1280); halves(96); wpath("wo")
    k(f"{labs['wd']}:"); src(44, 1728 * 1280)
    k("s_cmp_ge_u32 s22, 9", f"s_cbranch_scc1 {Lend}")
    k("s_sub_u32 s12, s2, 112", "s_and_b32 s13, s12, 7", "s_lshr_b32 s14, s12, 3", "s_mul_i32 s14, s14, 9", "s_add_u32 s14, s14, s22")
    wpath("wd")
    k(f"{labs['x']}:"); src(32, 2048 * 1280)
    k("s_sub_u32 s13, s2, 160")
    k("v_lshrrev_b32 v3, 3, v1", "v_and_b32 v4, 7, v1", "v_mul_u32_u24 v5, 1280, v3", "v_lshl_add_u32 v5, v4, 4, v5",
      "v_lshlrev_b32 v6, 9, v4", "v_lshl_add_u32 v6, v3, 4, v6")
    k(f"s_mul_i32 s24, s13, {32*1280}", "s_lshl_b32 s25, s22, 7", "s_add_u32 s24, s24, s25")
    for i in range(4): k(f"buffer_load_dwordx4 {vr(16+4*i,4)}, v5, s[8:11], s24 offen", f"s_add_u32 s24, s24, {8*1280}")
    k(f"s_mul_i32 s24, s13, 40960", "s_lshl_b32 s25, s22, 12", "s_add_u32 s24, s24, s25", f"s_add_u32 s24, s24, {XA}")
    for i in range(4):
        k("s_waitcnt vmcnt(3)", f"buffer_store_dwordx4 {vr(16+4*i,4)}, v6, s[4:7], s24 offen offset:{i*128}")
        k(f"v_mov_b32 v{48+2*i}, 0", f"v_mov_b32 v{49+2*i}, 0")
        for r in range(4): k(f"v_dot2c_f32_bf16 v{48+2*i}, s27, v{16+4*i+r}", f"v_dot2c_f32_bf16 v{49+2*i}, v{16+4*i+r}, v{16+4*i+r}")
    k("v_mul_u32_u24 v7, 640, v3", "v_lshl_add_u32 v7, v4, 3, v7", "s_lshl_b32 s25, s22, 6", "v_add_u32 v7, s25, v7", "s_nop 1")
    for i in range(4): k(f"ds_write_b64 v7, {vr(48+2*i,2)} offset:{i*8*640}")
    k("s_waitcnt lgkmcnt(0)", "s_barrier")
    k("s_cmp_ge_u32 s22, 4", f"s_cbranch_scc1 {Lend}")
    k("v_mul_u32_u24 v7, 80, v0")
    for i in range(5): k(f"ds_read_b128 {vr(16+4*i,4)}, v7 offset:{16*i}")
    k(f"s_lshl_b32 s24, s13, 8", f"s_add_u32 s24, s24, {STA}", "v_and_b32 v7, 7, v0", "v_lshlrev_b32 v7, 14, v7", "v_and_b32 v8, 0xf8, v0", "v_add_u32 v7, v7, v8")
    k("s_waitcnt lgkmcnt(0)")
    for i in range(1, 10): k(f"v_add_f32 v16, v16, v{16+2*i}", f"v_add_f32 v17, v17, v{17+2*i}")
    k("buffer_store_dwordx2 v[16:17], v7, s[4:7], s24 offen")
    k(f"s_branch {Lend}")
    k(f"{labs['zero']}:")
    k("s_sub_u32 s13, s2, 224", "s_mul_i32 s24, s13, 10240", f"s_add_u32 s24, s24, {MBX}", f"s_add_u32 s25, s24, {SLOT}", "v_lshlrev_b32 v3, 4, v0")
    for i in range(4): k(f"v_mov_b32 v{16+i}, 0")
    k("buffer_store_dwordx4 v[16:19], v3, s[4:7], s24 offen", "buffer_store_dwordx4 v[16:19], v3, s[4:7], s25 offen")
    k(f"{Lend}:")
    k.stamp()
    k.stamp_flush(10)
    k(f"{Lend}x:")
    k("s_endpgm")
    return k
```

```python
import sys, os
from fw import *
from k_prep import gen_prep
from k_mega import gen_mega
NAME = "interleave_layers__mha_block__glu_gated_reglu__prompt"
def build(out):
    order = [gen_prep(), gen_mega()]
    hdr = open(f"cdna_kernels/{NAME}.s.ref").read().split("; Override launch")[0]
    txt = hdr + "\n".join(k.launch_line() for k in order) + "\n"
    txt += '.amdgcn_target "amdgcn-amd-amdhsa--gfx950"\n'
    for k in order: txt += k.text()
    open(out, "w").write(txt)
if __name__ == "__main__":
    build(sys.argv[1])
```
